```python
import torch

def _softmax(x, axis=-1):
    return torch.softmax(x, dim=axis)
def _gelu(x):
    return torch.nn.functional.gelu(x, approximate="tanh")
def _silu(x):
    return torch.nn.functional.silu(x)
def _sigmoid(x):
    return torch.sigmoid(x)
def _layernorm(x, axis=-1, eps=1e-5):
    m = x.mean(dim=axis, keepdim=True)
    v = x.var(dim=axis, keepdim=True, unbiased=False)
    return (x - m) / torch.sqrt(v + eps)
def _scatter_add(tgt, idx, src, axis=0):
    return tgt.clone().index_add_(axis, idx, src)
def _segment_sum(src, seg, n):
    out = torch.zeros((n,) + src.shape[1:], dtype=src.dtype)
    return out.index_add_(0, seg, src)
def _pad(x, pw):
    flat = tuple(v for pair in reversed(pw) for v in pair)
    return torch.nn.functional.pad(x, flat)

kernel_name = 'interleave_layers__spectral_gfnet__dense_activation_gelu__prompt'

def setup_inputs():

    _w = (lambda a: (lambda t: t.to(torch.bfloat16) if t.is_floating_point() else t)(torch.as_tensor(a)))
    def _A_setup():
        B, S, D = 1, 2048, 640
        Df = D // 2 + 1
        return {
            "x": _w((lambda *s: torch.randn(*s, dtype=torch.bfloat16) * 0.05)(B, S, D)),
            "w_r": _w((lambda *s: torch.randn(*s, dtype=torch.bfloat16) * 0.4)(S, Df) * 0.02),
            "w_i": _w((lambda *s: torch.randn(*s, dtype=torch.bfloat16) * 0.4)(S, Df) * 0.02),
        }
    _A_in = _A_setup()

    def _B_setup():
        B, S, D, F = 1, 2048, 640, 1536
        return {
            "x": _w((lambda *s: torch.randn(*s, dtype=torch.bfloat16) * 0.05)(B, S, D)),
            "w1": _w((lambda *s: torch.randn(*s, dtype=torch.bfloat16) * 0.4)(D, F) * (D ** -0.5)),
            "b1": _w((lambda *s: torch.randn(*s, dtype=torch.bfloat16) * 12.8)(F) * 0.01),
            "w2": _w((lambda *s: torch.randn(*s, dtype=torch.bfloat16) * 0.1)(F, D) * (F ** -0.5)),
            "b2": _w((lambda *s: torch.randn(*s, dtype=torch.bfloat16) * 0.8)(D) * 0.01),
        }
    _B_in = _B_setup()

    return {
        "A_x": _A_in["x"],
        "A_w_r": _A_in["w_r"],
        "A_w_i": _A_in["w_i"],
        "B_x": _B_in["x"],
        "B_w1": _B_in["w1"],
        "B_b1": _B_in["b1"],
        "B_w2": _B_in["w2"],
        "B_b2": _B_in["b2"],
    }

def reference(A_x, A_w_r, A_w_i, B_x, B_w1, B_b1, B_w2, B_b2):
    def _A_ref(x, w_r, w_i):
        B, S, D = x.shape
        X = (lambda x, axes=(-2,-1): torch.fft.rfft2(x.float(), dim=axes))(x, axes=(-2, -1))
        W = w_r + 1j * w_i
        X = X * W
        y = (lambda x, s, axes=(-2,-1): torch.fft.irfft2(x, s=s, dim=axes).to(torch.bfloat16))(X, (S, D), axes=(-2, -1))
        return y

    def _B_ref(x, w1, b1, w2, b2):
        h = torch.einsum("bsd,df->bsf", x, w1) + b1
        h = _gelu(h)
        return torch.einsum("bsf,fd->bsd", h, w2) + b2

    x = A_x
    x = x + _A_ref(_layernorm(x, axis=-1), A_w_r, A_w_i)
    x = x + _B_ref(_layernorm(x, axis=-1), B_w1, B_b1, B_w2, B_b2)
    x = x + _A_ref(_layernorm(x, axis=-1), A_w_r, A_w_i)
    x = x + _B_ref(_layernorm(x, axis=-1), B_w1, B_b1, B_w2, B_b2)
    return x
```

```python
import re, struct

def f2u(x):
    return struct.unpack('<I', struct.pack('<f', x))[0]
def fhex(x):
    return '0x%08x' % f2u(x)

_reg_re = re.compile(r'^(-|\|)?(abs\()?([vas])(\d+|\[(\d+):(\d+)\])\)?\|?$')
def parse_reg(op):
    op = op.strip()
    if op in ('vcc', 'vcc_lo', 'vcc_hi'): return {('s', 'vcc')}
    if op == 'exec': return {('s', 'exec')}
    if op == 'm0': return {('s', 'm0')}
    m = _reg_re.match(op)
    if not m: return set()
    k = m.group(3)
    if m.group(5) is not None:
        return {(k, i) for i in range(int(m.group(5)), int(m.group(6)) + 1)}
    return {(k, int(m.group(4)))}

def split_ops(s):
    out, depth, cur = [], 0, ''
    for ch in s:
        if ch in '[(': depth += 1
        if ch in '])': depth -= 1
        if ch == ',' and depth == 0:
            out.append(cur.strip()); cur = ''
        else: cur += ch
    if cur.strip(): out.append(cur.strip())
    return out

TRANS = ('v_exp_f32', 'v_log_f32', 'v_rcp_f32', 'v_rsq_f32', 'v_sqrt_f32', 'v_sin_f32', 'v_cos_f32')

class Ins:
    def __init__(self, text):
        self.text = text
        t = text.split(';')[0].strip()
        parts = t.split(None, 1)
        self.op = parts[0]
        rest = parts[1] if len(parts) > 1 else ''
        ops = split_ops(rest)
        mods = ''
        if ops:
            last = ops[-1].split()
            ops[-1] = last[0]; mods = ' '.join(last[1:])
        self.ops, self.mods = ops, mods
        op = self.op
        R = [parse_reg(o) for o in ops]
        self.w, self.r = set(), set()
        self.kind = 'other'
        self.srcC = set(); self.srcAB = set()
        U = lambda l: set().union(*l) if l else set()
        if op.startswith('v_mfma'):
            self.kind = 'mfma'; self.w = R[0]; self.srcAB = R[1] | R[2]; self.srcC = R[3]; self.r = self.srcAB | self.srcC
            self.passes = 4 if '16x16x32' in op else 8
        elif op.startswith('v_'):
            self.kind = 'valu'
            if 'permlane' in op and 'swap' in op:
                self.w = R[0] | R[1]; self.r = R[0] | R[1]
            elif op.startswith(('v_add_co', 'v_sub_co', 'v_addc_co', 'v_subb_co', 'v_subrev_co')):
                self.w = R[0] | R[1]; self.r = U(R[2:])
            else:
                self.w = R[0]; self.r = U(R[1:])
                if op.startswith(('v_fmac', 'v_dot2c', 'v_pk_fmac', 'v_writelane')) or '_dpp' in op or 'row_' in mods: self.r |= R[0]
                if op.startswith('v_cndmask') and len(ops) == 3: self.r |= {('s', 'vcc')}
            self.trans = op.replace('_e32', '').replace('_e64', '') in TRANS
            self.dpp = ('_dpp' in op) or ('row_' in mods) or ('quad_perm' in mods)
            self.dot = op.startswith('v_dot')
        elif op.startswith('ds_'):
            self.kind = 'ds'
            if op.startswith(('ds_read', 'ds_bpermute', 'ds_permute', 'ds_swizzle')):
                self.w = R[0]; self.r = U(R[1:])
            else:
                self.r = U(R)
        elif op.startswith(('buffer_', 'global_')):
            self.kind = 'vmem'
            lds = ' lds' in (' ' + mods) or '_lds_' in op
            self.lds = lds
            if op in ('buffer_inv', 'buffer_wbl2'): pass
            elif '_load' in op and not lds:
                self.w = R[0]; self.r = U(R[1:])
            elif 'atomic' in op and 'sc0' in mods:
                self.w = R[0]; self.r = U(R)
            else:
                self.r = U(R)
            if lds: self.r |= {('s', 'm0')}
            self.wide_store = ('_store_dwordx4' in op or '_store_dwordx3' in op)
            if self.wide_store:
                self.sdata = R[0] if op.startswith('buffer_') else R[1]
        elif op.startswith('s_'):
            self.kind = 'salu'
            if op.startswith(('s_load', 's_memtime', 's_memrealtime', 's_buffer_load')):
                self.kind = 'smem'; self.w = R[0]; self.r = U(R[1:])
            elif op.startswith(('s_cmp', 's_cbranch', 's_branch', 's_waitcnt', 's_nop', 's_barrier', 's_endpgm', 's_sleep', 's_setprio', 's_bitcmp')):
                self.r = U(R)
            else:
                self.w = R[0] if R else set(); self.r = U(R[1:])
                if 'saveexec' in op: self.w |= {('s', 'exec')}
    def states(self):
        if self.op == 's_nop': return int(self.ops[0], 0) + 1
        return 1

def need(p, c):
    n = 0
    vw = {x for x in p.w if x[0] in 'va'}
    sw = {x for x in p.w if x[0] == 's'}
    if p.kind == 'valu':
        if c.kind == 'mfma' and vw & c.r: n = max(n, 2)
        if c.kind == 'mfma' and p.op.startswith('v_pk_') and p.mods: n = max(n, 1)
        if c.kind == 'valu':
            if p.trans and not c.trans and vw & c.r: n = max(n, 1)
            if p.trans and c.trans and vw & c.r: n = max(n, 1)
            if 'permlane' in c.op and vw & c.r: n = max(n, 2)
            if c.dpp and vw & c.r: n = max(n, 2)
            if c.op.startswith(('v_readlane', 'v_readfirstlane')) and vw & c.r: n = max(n, 1)
            if sw & c.r: n = max(n, 4 if c.op.startswith(('v_readlane', 'v_writelane')) else 2)
            if p.dot:
                if c.op == p.op:
                    ab = parse_reg(c.ops[1]) | parse_reg(c.ops[2])
                    if vw & ab: n = max(n, 3)
                elif vw & (c.r | c.w): n = max(n, 3)
        if p.dot and c.kind in ('ds', 'vmem', 'mfma') and vw & c.r: n = max(n, 3)
        if c.kind == 'vmem' and sw & c.r: n = max(n, 5)
        if c.kind in ('salu', 'smem') and sw & c.r and ('s','vcc') not in (sw & c.r): n = max(n, 1)
    if p.kind == 'mfma':
        big = 8 if p.passes == 4 else 12
        if c.kind == 'mfma':
            if vw & c.srcAB: n = max(n, big)
            if vw & c.srcC and not (c.srcC == vw and c.passes == p.passes): n = max(n, big - 2)
            if vw & c.w and not (vw & c.srcC): n = max(n, big - 2)
        elif c.kind in ('valu', 'ds', 'vmem'):
            if vw & (c.r | c.w): n = max(n, big)
            if c.kind == 'valu' and p.srcC & c.w: n = max(n, 3 if p.passes == 4 else 7)
            if c.kind != 'valu' and p.srcC & c.w: n = max(n, 3 if p.passes == 4 else 7)
    if p.kind == 'salu' and ('s', 'm0') in sw and c.kind == 'vmem' and c.lds: n = max(n, 1)
    if p.kind == 'vmem' and p.wide_store and p.sdata & c.w: n = max(n, 2)
    return n

class Asm:
    def __init__(self):
        self.lines = []
        self.hist = []
        self.vm = []
        self.lg = []
        self.smem = False
        self.nid = 0
        self.nops = 0
    def raw(self, s): self.lines.append(s)
    def comment(self, s): self.lines.append('    ; ' + s)
    def label(self, name):
        self.lines.append(name + ':')
    def _push(self, ins):
        self.lines.append('    ' + ins.text)
        self.hist.append(ins)
        if len(self.hist) > 24: self.hist.pop(0)
    def _hazard(self, ins):
        d = 0; req = 0
        for p in reversed(self.hist):
            n = need(p, ins)
            if n - d > req: req = n - d
            d += p.states()
            if d >= 20: break
        while req > 0:
            k = min(req, 16)
            self._push(Ins('s_nop %d' % (k - 1))); self.nops += k
            req -= k
    def _count_after(self, q, idx):
        return sum(1 for e in q[idx + 1:] if e[2])
    def _wait(self, vm=None, lg=None):
        s = []
        if vm is not None: s.append('vmcnt(%d)' % min(vm, 63))
        if lg is not None: s.append('lgkmcnt(%d)' % min(lg, 15))
        self._push(Ins('s_waitcnt ' + ' '.join(s)))
    def _retire(self, q, idx): del q[:idx + 1]
    def _auto_wait(self, ins):
        touch = ins.r | ins.w
        vm = lg = None
        for i in range(len(self.vm) - 1, -1, -1):
            if self.vm[i][1] & touch:
                vm = self._count_after(self.vm, i); self._retire(self.vm, i); break
        for i in range(len(self.lg) - 1, -1, -1):
            if self.lg[i][1] & touch:
                lg = 0 if self.smem else self._count_after(self.lg, i)
                if self.smem: self.lg = []; self.smem = False
                else: self._retire(self.lg, i)
                break
        if vm is not None or lg is not None: self._wait(vm, lg)
    def __call__(self, text, maybe=False, dummy=False):
        ins = Ins(text)
        if dummy: ins.w = set()
        self._auto_wait(ins)
        self._hazard(ins)
        self._push(ins)
        self.nid += 1
        if ins.kind == 'vmem': self.vm.append([self.nid, set(ins.w), not maybe])
        elif ins.kind == 'ds': self.lg.append([self.nid, set(ins.w), not maybe])
        elif ins.kind == 'smem': self.lg.append([self.nid, set(ins.w), True]); self.smem = True
        return self.nid
    def wait_vm(self, tok):
        for i, e in enumerate(self.vm):
            if e[0] == tok:
                n = self._count_after(self.vm, i); self._retire(self.vm, i); self._wait(vm=n); return
    def wait_lg(self, tok):
        for i, e in enumerate(self.lg):
            if e[0] == tok:
                n = 0 if self.smem else self._count_after(self.lg, i)
                if self.smem: self.lg = []; self.smem = False
                else: self._retire(self.lg, i)
                self._wait(lg=n); return
    def wait_all(self, vm=True, lg=True):
        self._wait(0 if vm else None, 0 if lg else None)
        if vm: self.vm = []
        if lg: self.lg = []; self.smem = False
    def forget(self):
        self.vm = []; self.lg = []; self.smem = False; self.hist = []
    def pad(self, n=8):
        self._push(Ins('s_nop %d' % (n - 1)))
    def text(self): return '\n'.join(self.lines) + '\n'

def vr(b, n=1, k='v'):
    return f'{k}{b}' if n == 1 else f'{k}[{b}:{b+n-1}]'
def ar(b, n=1): return vr(b, n, 'a')
def sr(b, n=1): return vr(b, n, 's')
```

```python
import sys, math
from asmlib import *

XT = [0x000000, 0x280000, 0x500000, 0x780000]
HB = [0xA00000, 0x1000000]
W1F, W2F, W2G, WT = 0x1600000, 0x1800000, 0x1A00000, 0x1C00000
ST0, ST2, FLG = 0x1E80000, 0x1E82000, 0x1E84000
WS_SIZE = 0x2000000
W2STRIDE = 256000
ALPHA = math.sqrt(2.0 / 640.0)
LDS_STG, LDS_RED, LDS_X = 0, 81920, 143360
LDS_TOTAL = 147456

sW, sRB, sCB, sLAY = 's4', 's5', 's6', 's7'
SRD_WS, SRD_A, SRD_B = 's[8:11]', 's[12:15]', 's[36:39]'
P_X, P_WR, P_WI, P_W1, P_B1, P_W2, P_B2, P_OUT, P_WS = 16, 18, 20, 24, 26, 28, 30, 32, 34

A = Asm()
STSC = ' sc1'

def srd(dst, ptr, size):
    A(f's_mov_b32 s{dst}, s{ptr}')
    A(f's_mov_b32 s{dst+1}, s{ptr+1}')
    A(f's_mov_b32 s{dst+2}, {size}')
    A(f's_mov_b32 s{dst+3}, 0x20000')

def mfma(d, a, b, c=None):
    A(f'v_mfma_f32_16x16x32_bf16 {vr(d,4)}, {a}, {b}, {vr(d,4) if c is None else c}')

def prologue(name, nwg, endlabel):
    A.forget()
    A(f's_cmp_ge_u32 s2, {nwg}')
    A(f's_cbranch_scc1 {endlabel}')
    A('s_load_dwordx16 s[16:31], s[0:1], 0')
    A('s_load_dwordx2 s[32:33], s[0:1], 64')
    A('s_load_dwordx2 s[34:35], s[0:1], 80')

def kernel_head(name):
    A.raw(f'.globl {name}\n.p2align 8\n.type {name},@function\n{name}:')

def lane_ids(vL, vN, vQ, vL16):
    A(f'v_readfirstlane_b32 {sW}, v0')
    A(f'v_and_b32 v{vL}, 63, v0')
    A(f'v_and_b32 v{vN}, 15, v0')
    A(f'v_bfe_u32 v{vQ}, v0, 4, 2')
    A(f'v_lshlrev_b32 v{vL16}, 4, v{vL}')
    A(f's_lshr_b32 {sW}, {sW}, 6')

def wg_map():
    A('s_and_b32 s3, s2, 7')
    A('s_lshl_b32 s3, s3, 2')
    A(f's_lshr_b32 {sRB}, s2, 6')
    A(f's_add_u32 {sRB}, {sRB}, s3')
    A(f's_bfe_u32 {sCB}, s2, 0x30003')

def code_prefetch(lo, hi, vtmp, vdst, nk):
    lbl = f'Lpc_{A.nid}'
    A('s_getpc_b64 s[40:41]')
    A.label(lbl)
    if hi == 'back':
        A(f's_sub_u32 s40, s40, {lbl}-{lo}')
        A('s_subb_u32 s41, s41, 0')
    else:
        A(f's_add_u32 s40, s40, {lo}-{lbl}')
        A('s_addc_u32 s41, s41, 0')
    A(f'v_lshlrev_b32 v{vtmp}, 6, v0')
    for k in range(nk):
        if k: A(f'v_add_u32 v{vtmp}, 0x4000, v{vtmp}')
        A(f'global_load_dword v{vdst}, v{vtmp}, s[40:41]', dummy=True)

def interleave(main, side, start=0, every=1):
    si = 0
    for i, m in enumerate(main):
        m()
        if i >= start and (i - start) % every == 0 and si < len(side):
            side[si](); si += 1
    while si < len(side):
        side[si](); si += 1

def cmap_regs(vN, vC, t1, t2):
    A(f's_lshr_b32 s40, {sCB}, 1')
    A('s_mul_i32 s40, s40, 160')
    A(f's_and_b32 s42, {sCB}, 1')
    A('s_lshl_b32 s41, s42, 4')
    A('s_add_u32 s41, s41, s40')
    A('s_add_u32 s41, s41, 64')
    A('s_mul_i32 s43, s42, 96')
    A('s_add_u32 s40, s40, s43')
    A(f'v_lshrrev_b32 v{t1}, 2, v{vN}')
    A(f'v_and_b32 v{t2}, 3, v{vN}')
    A(f'v_lshl_add_u32 v{t1}, v{t1}, 3, v{t2}')
    A(f'v_add_u32 v{vC}, s40, v{t1}')
    A(f'v_add_u32 v{vC+1}, 4, v{vC}')
    A(f'v_add_u32 v{vC+2}, 32, v{vC}')
    A(f'v_add_u32 v{vC+3}, 36, v{vC}')
    A(f'v_add_u32 v{vC+4}, s41, v{vN}')

def ksplit_core(NK, xfrag, yfrag, orient, acc, init_zero, vREDW, vREDR, vRED, presum=None, side=None):
    side = side or {}
    for j in range(4):
        main = []
        for ks in range(NK):
            for t in range(5):
                def f(ks=ks, t=t):
                    c = '0' if (init_zero and ks == 0) else None
                    x, y = xfrag(j, ks), yfrag(ks, t)
                    if orient == 'R': mfma(acc(j, t), x, y, c)
                    else: mfma(acc(j, t), y, x, c)
                main.append(f)
        sd = []
        if j > 0:
            for t in range(5):
                sd.append(lambda t=t: A(f'ds_write_b128 v{vREDW[j-1]}, {vr(acc(j-1,t),4)} offset:{(j-1)*5120+t*1024}'))
        if j == 3:
            def bar():
                A.wait_all(vm=False); A('s_barrier')
            sd.append(bar)
            for jj in range(3):
                for t in range(5):
                    sd.append(lambda jj=jj, t=t: A(f'ds_read_b128 {vr(vRED+jj*20+t*4,4)}, v{vREDR} offset:{jj*5120+t*1024}'))
            for jj in (1, 2):
                for k in range(0, 20, 2):
                    sd.append(lambda jj=jj, k=k: A(f'v_pk_add_f32 {vr(vRED+k,2)}, {vr(vRED+k,2)}, {vr(vRED+jj*20+k,2)}'))
            if presum: sd += presum
        sd += side.get(j, [])
        n = len(main)
        if j == 3 and len(sd) > n - 6:
            sd2 = []
            it = iter(sd)
            lst = list(sd)
            per = -(-len(lst) // (n - 6))
            for k in range(0, len(lst), per):
                sd2.append(lambda grp=lst[k:k+per]: [g() for g in grp])
            sd = sd2
        interleave(main, sd, start=4, every=1)

def red_addrs(vL16, vREDW, vREDR):
    for j in range(3):
        A(f's_add_u32 s40, {sW}, {j+1}')
        A('s_and_b32 s40, s40, 3')
        A('s_mul_i32 s40, s40, 15360')
        A(f's_add_u32 s40, s40, {LDS_RED}')
        A(f'v_add_u32 v{vREDW[j]}, s40, v{vL16}')
    A(f's_mul_i32 s40, {sW}, 15360')
    A(f's_add_u32 s40, s40, {LDS_RED}')
    A(f'v_add_u32 v{vREDR}, s40, v{vL16}')

def pack_R(val, vP):
    for t in range(5):
        A(f'v_cvt_pk_bf16_f32 v{vP+2*t}, v{val(t)}, v{val(t)+1}')
        A(f'v_cvt_pk_bf16_f32 v{vP+2*t+1}, v{val(t)+2}, v{val(t)+3}')
    for p in range(2):
        for k in range(2):
            A(f'v_permlane16_swap_b32 v{vP+4*p+k}, v{vP+4*p+2+k}')

def pack_L(val, vP):
    for t in range(5):
        A(f'v_cvt_pk_bf16_f32 v{vP+2*t}, v{val(t)}, v{val(t)+1}')
        A(f'v_cvt_pk_bf16_f32 v{vP+2*t+1}, v{val(t)+2}, v{val(t)+3}')

def gen_p0():
    kernel_head('p0_kernel')
    prologue('p0', 256, 'L_p0_end')
    vL, vN, vQ, vL16 = 1, 2, 3, 4
    vROW, vCO, vOFF = 5, 10, 15
    vC = 20
    vREDW, vREDR = [25, 26, 27], 28
    vFR = 29
    vTR = 30
    vS1, vS2 = 34, 35
    vBO = 36
    t0, t1, t2, t3 = 38, 39, 40, 41
    vP = 44
    vAL = 54
    vACC = 56
    vRED = 96
    vQF = 156
    vSEED = 96
    lane_ids(vL, vN, vQ, vL16)
    wg_map()
    for i in range(5):
        A(f'v_add_u32 v{t0}, {64*i}, v{vL}')
        A(f'v_mul_u32_u24 v{vROW+i}, 3277, v{t0}')
        A(f'v_lshrrev_b32 v{vROW+i}, 16, v{vROW+i}')
        A(f'v_mul_u32_u24 v{t1}, 20, v{vROW+i}')
        A(f'v_sub_u32 v{t0}, v{t0}, v{t1}')
        A(f'v_lshrrev_b32 v{t1}, 2, v{vROW+i}')
        A(f'v_and_b32 v{t1}, 2, v{t1}')
        A(f'v_xor_b32 v{t0}, v{t0}, v{t1}')
        A(f'v_lshlrev_b32 v{vCO+i}, 4, v{t0}')
    A('s_mov_b32 s44, 81920')
    for i in range(5):
        A(f'v_mad_u32_u24 v{vOFF+i}, v{vROW+i}, s44, v{vCO+i}')
    A(f's_mul_i32 s45, {sW}, 20480')
    A(f's_mul_i32 s46, {sW}, 320')
    A.wait_all(vm=False)
    srd(8, P_WS, WS_SIZE)
    srd(12, P_X, 2621440)
    def dma_rows(soff_fn, maybe):
        for j in range(4):
            A(f's_add_u32 s40, {sW}, {j+1}')
            A('s_and_b32 s40, s40, 3')
            soff_fn()
            for i in range(5):
                A(f's_add_u32 m0, s45, {j*5120+i*1024}')
                A(f'buffer_load_dwordx4 v{vOFF+i}, {SRD_A}, s41 offen lds', maybe=maybe)
    def soff_a():
        A('s_lshr_b32 s41, s40, 1')
        A(f's_lshl_b32 s42, {sRB}, 1')
        A('s_add_u32 s41, s41, s42')
        A('s_mul_i32 s41, s41, 1280')
        A('s_and_b32 s42, s40, 1')
        A(f's_mul_i32 s42, s42, {16*81920}')
        A('s_add_u32 s41, s41, s42')
        A('s_add_u32 s41, s41, s46')
    dma_rows(soff_a, False)
    tok_a = A.nid
    vSX = 96 + 24
    A(f's_lshl_b32 s40, {sCB}, 3')
    A(f's_lshl_b32 s41, {sW}, 1')
    A('s_add_u32 s40, s40, s41')
    A(f'v_lshrrev_b32 v{t0}, 5, v{vL}')
    A(f'v_add_u32 v{t0}, s40, v{t0}')
    A(f'v_and_b32 v{t1}, 31, v{t0}')
    A(f'v_lshrrev_b32 v{t2}, 5, v{t0}')
    A(f's_lshl_b32 s41, {sRB}, 1')
    A(f'v_add_u32 v{t2}, s41, v{t2}')
    A(f'v_lshl_add_u32 v{t3}, v{t1}, 6, v{t2}')
    vSTA = 42
    A(f'v_lshl_add_u32 v{vSTA}, v{t2}, 5, v{t1}')
    A(f'v_lshlrev_b32 v{vSTA}, 2, v{vSTA}')
    A(f'v_mul_u32_u24 v{t3}, 1280, v{t3}')
    A(f'v_and_b32 v{t0}, 31, v{vL}')
    A(f'v_lshl_add_u32 v{t3}, v{t0}, 4, v{t3}')
    A(f'v_and_b32 v{t1}, 16, v{vL}')
    A(f'v_lshl_add_u32 v{t1}, v{t1}, 26, v{t3}')
    A(f'buffer_load_dwordx4 {vr(vSX,4)}, v{t3}, {SRD_A}, 0 offen')
    A(f'buffer_load_dwordx4 {vr(vSX+4,4)}, v{t3}, {SRD_A}, 0 offen offset:512')
    A(f'buffer_load_dwordx4 {vr(vSX+8,4)}, v{t1}, {SRD_A}, 0 offen offset:1024')
    code_prefetch('p0_kernel', 'back', t0, 43, 3)
    A('s_cmp_ge_u32 s2, 18')
    A('s_cbranch_scc1 L_p0_nozero')
    for k in range(4): A(f'v_mov_b32 v{vP+k}, 0')
    A(f'v_lshlrev_b32 v{t0}, 4, v0')
    A('s_lshl_b32 s40, s2, 12')
    A(f's_add_u32 s40, s40, {ST2}')
    A(f'buffer_store_dwordx4 {vr(vP,4)}, v{t0}, {SRD_WS}, s40 offen', maybe=True)
    A.label('L_p0_nozero')
    cmap_regs(vN, vC, t0, t1)
    A('s_mov_b32 s47, s40')
    A('s_mov_b32 s48, s41')
    A(f's_mul_i32 s40, {sW}, 160')
    A(f'v_lshl_add_u32 v{t0}, v{vQ}, 3, s40')
    vD0, vRHO, vPH, vSTEP, vBASE, vA2 = 133, 134, 135, 136, 137, 138
    A(f'v_cvt_f32_u32 v{vD0}, v{t0}')
    for t in range(5):
        c = vC + t
        A(f'v_lshrrev_b32 v{t0}, 1, v{c}')
        A(f'v_and_b32 v{t1}, 1, v{c}')
        A(f'v_cvt_f32_u32 v{vRHO}, v{t0}')
        A(f'v_cvt_f32_u32 v{vPH}, v{t1}')
        A(f'v_mul_f32 v{vPH}, 0.25, v{vPH}' if False else f'v_mul_f32 v{vPH}, {fhex(0.25)}, v{vPH}')
        if t == 0:
            A(f'v_cmp_gt_u32 vcc, 2, v{c}')
            A(f'v_mov_b32 v{t2}, {fhex(0.125)}')
            A(f'v_cndmask_b32 v{vPH}, v{vPH}, v{t2}, vcc')
            A(f'v_cmp_eq_u32 vcc, 0, v{c}')
            A(f'v_mov_b32 v{t2}, {fhex(320.0)}')
            A(f'v_cndmask_b32 v{vRHO}, v{vRHO}, v{t2}, vcc')
        A(f'v_mul_f32 v{t0}, v{vRHO}, v{vD0}')
        A(f'v_mul_f32 v{t1}, {fhex(1/640)}, v{t0}')
        A(f'v_floor_f32 v{t1}, v{t1}')
        A(f'v_fmamk_f32 v{t0}, v{t1}, {fhex(-640.0)}, v{t0}')
        A(f'v_fmamk_f32 v{vBASE}, v{t0}, {fhex(1/640)}, v{vPH}')
        A(f'v_mul_f32 v{vSTEP}, {fhex(1/640)}, v{vRHO}')
        A(f'v_mul_f32 v{t0}, {fhex(32.0)}, v{vSTEP}')
        A(f'v_cos_f32 v{vA2}, v{t0}')
        for ks in range(2):
            for e in range(8):
                r = vSEED + ks * 8 + e
                k = 32 * ks + e
                if k == 0: A(f'v_cos_f32 v{r}, v{vBASE}')
                else:
                    A(f'v_fmamk_f32 v{r}, v{vSTEP}, {fhex(float(k))}, v{vBASE}')
                    A(f'v_cos_f32 v{r}, v{r}')
        A(f'v_add_f32 v{vA2}, v{vA2}, v{vA2}')
        for ks in range(5):
            cur = vSEED + (ks & 1) * 8; prv = vSEED + ((ks + 1) & 1) * 8
            if ks >= 2:
                for e in range(0, 8, 2):
                    A(f'v_pk_fma_f32 {vr(cur+e,2)}, {vr(vA2,2)}, {vr(prv+e,2)}, {vr(cur+e,2)} op_sel_hi:[0,1,1] neg_lo:[0,0,1] neg_hi:[0,0,1]')
            for e in range(0, 8, 2):
                A(f'v_cvt_pk_bf16_f32 v{vQF+(ks*5+t)*4+e//2}, v{cur+e}, v{cur+e+1}')
    A(f'v_mov_b32 v{vAL}, {fhex(ALPHA)}')
    A(f'v_mov_b32 v{vAL+1}, {fhex(ALPHA)}')
    red_addrs(vL16, vREDW, vREDR)
    A(f'v_lshrrev_b32 v{t0}, 2, v{vN}')
    A(f'v_and_b32 v{t0}, 2, v{t0}')
    A(f'v_xor_b32 v{t0}, v{t0}, v{vQ}')
    A(f'v_lshlrev_b32 v{t0}, 4, v{t0}')
    A(f'v_mul_u32_u24 v{t1}, 320, v{vN}')
    A(f'v_add3_u32 v{vFR}, v{t0}, v{t1}, s45')
    vO, vSU, vSQ = 140, 141, 142
    A(f'v_mov_b32 v{vO}, 0x3f803f80')
    A(f'v_mov_b32 v{vSU}, 0')
    A(f'v_mov_b32 v{vSQ}, 0')
    for k in range(12):
        A(f'v_dot2_f32_bf16 v{vSU}, v{vSX+k}, v{vO}, v{vSU}')
        A(f'v_dot2_f32_bf16 v{vSQ}, v{vSX+k}, v{vSX+k}, v{vSQ}')
    for sh in (8, 4, 2, 1):
        A(f'v_add_f32_dpp v{vSU}, v{vSU}, v{vSU} row_ror:{sh} row_mask:0xf bank_mask:0xf')
        A(f'v_add_f32_dpp v{vSQ}, v{vSQ}, v{vSQ} row_ror:{sh} row_mask:0xf bank_mask:0xf')
    A(f'v_mov_b32 v{t0}, v{vSU}')
    A(f'v_mov_b32 v{t1}, v{vSQ}')
    A(f'v_permlane16_swap_b32 v{vSU}, v{t0}')
    A(f'v_permlane16_swap_b32 v{vSQ}, v{t1}')
    A(f'v_add_f32 v{vSU}, v{vSU}, v{t0}')
    A(f'v_add_f32 v{vSQ}, v{vSQ}, v{t1}')
    A(f'v_mul_f32 v{t0}, {fhex(-1/640)}, v{vSU}')
    A(f'v_fmac_f32 v{vSQ}, v{t0}, v{vSU}')
    A(f'v_max_f32 v{vSQ}, 0, v{vSQ}')
    A('s_mov_b32 exec_lo, 1')
    A('s_mov_b32 exec_hi, 1')
    A(f's_mov_b32 s40, {ST0}')
    A(f'buffer_store_dword v{vSQ}, v{vSTA}, {SRD_WS}, s40 offen')
    A('s_mov_b64 exec, -1')

    def read_row_frags():
        for j in range(4):
            for ks in range(5):
                A(f'ds_read_b128 {ar((j*5+ks)*4,4)}, v{vFR} offset:{j*5120+ks*64}')
    xf = lambda j, ks: ar((j * 5 + ks) * 4, 4)
    yf = lambda ks, t: vr(vQF + (ks * 5 + t) * 4, 4)
    accf = lambda j, t: vACC + (j & 1) * 20 + t * 4
    def finish_scale():
        for k in range(0, 20, 2):
            A(f'v_pk_add_f32 {vr(vRED+k,2)}, {vr(vRED+k,2)}, {vr(vACC+20+k,2)}')
        for k in range(0, 20, 2):
            A(f'v_pk_mul_f32 {vr(vRED+k,2)}, {vr(vRED+k,2)}, {vr(vAL,2)}')
    def dma_c(maybe=True):
        A(f's_sub_u32 s50, 31, {sRB}')
        A('s_mov_b32 s44, 1280')
        for i in range(5):
            A(f'v_mad_u32_u24 v{vOFF+i}, v{vROW+i}, s44, v{vCO+i}')
        A('s_cmp_eq_u32 s50, 24')
        A(f's_cselect_b32 s12, s{P_B2}, s{P_W2}')
        A(f's_cselect_b32 s13, s{P_B2+1}, s{P_W2+1}')
        A('s_mov_b32 s42, 1966080')
        A('s_cselect_b32 s14, 1280, s42')
        A('s_cselect_b32 s51, 0, s50')
        A('s_mov_b32 s15, 0x20000')
        A('s_mul_i32 s51, s51, 81920')
        A('s_add_u32 s51, s51, s46')
        def soff_c():
            A('s_mul_i32 s41, s40, 20480')
            A('s_add_u32 s41, s41, s51')
        dma_rows(soff_c, maybe)

    A.wait_vm(tok_a)
    read_row_frags()
    A.wait_all(vm=False)
    A(f's_cmp_ge_u32 {sRB}, 24')
    A('s_cbranch_scc1 L_p0_dmaW')
    srd(12, P_W1, 1966080)
    A(f'v_lshrrev_b32 v{t0}, 3, v{vL}')
    A(f'v_and_b32 v{t1}, 7, v{vL}')
    A(f'v_and_b32 v{t2}, 2, v{t0}')
    A(f'v_xor_b32 v{t1}, v{t1}, v{t2}')
    A(f'v_lshlrev_b32 v{t1}, 4, v{t1}')
    A(f'v_mul_u32_u24 v{t0}, 3072, v{t0}')
    A(f'v_add_u32 v{vBO}, v{t0}, v{t1}')
    A(f'v_xor_b32 v{vBO+1}, 64, v{vBO}')
    A(f's_mul_i32 s41, {sW}, {160*3072}')
    A(f's_lshl_b32 s42, {sRB}, 7')
    A('s_add_u32 s41, s41, s42')
    for i in range(20):
        A(f's_add_u32 m0, s45, {i*1024}')
        A(f'buffer_load_dwordx4 v{vBO+(i&1)}, {SRD_A}, s41 offen lds', maybe=True)
        A(f's_add_u32 s41, s41, {8*3072}')
    A('s_branch L_p0_dmadone')
    A.label('L_p0_dmaW')
    A(f's_sub_u32 s52, {sRB}, 24')
    A('s_lshl_b32 s52, s52, 3')
    A(f's_add_u32 s52, s52, {sCB}')
    A('s_lshr_b32 s41, s52, 2')
    A('s_lshl_b32 s41, s41, 7')
    A(f's_lshl_b32 s42, {sW}, 5')
    A('s_add_u32 s41, s41, s42')
    A('s_and_b32 s42, s52, 3')
    A('s_lshl_b32 s42, s42, 3')
    A('s_add_u32 s41, s41, s42')
    A('s_mul_i32 s41, s41, 642')
    for part, ptr in ((0, P_WR), (1, P_WI)):
        srd(12, ptr, 2048 * 642)
        A('s_mov_b32 s42, s41')
        for i in range(6):
            A(f's_add_u32 m0, s45, {part*6144+i*1024}')
            A(f'buffer_load_dwordx4 v{vL16}, {SRD_A}, s42 offen lds', maybe=True)
            A('s_add_u32 s42, s42, 1024')
    A.label('L_p0_dmadone')
    ksplit_core(5, xf, yf, 'R', accf, True, vREDW, vREDR, vRED)
    finish_scale()
    pack_R(lambda t: vRED + 4 * t, vP)
    A(f'v_and_b32 v{t0}, 1, v{vQ}')
    A(f'v_lshl_add_u32 v{t0}, v{t0}, 2, v{vC}')
    A(f'v_lshrrev_b32 v{t1}, 1, v{vQ}')
    A(f'v_lshlrev_b32 v{t1}, 4, v{t1}')
    A(f'v_lshl_add_u32 v{vS1}, v{t0}, 6, v{t1}')
    A(f'v_lshlrev_b32 v{t1}, 3, v{vQ}')
    A(f'v_lshl_add_u32 v{vS2}, v{vC+4}, 6, v{t1}')
    A(f's_lshr_b32 s40, {sW}, 1')
    A(f's_lshl_b32 s41, {sRB}, 1')
    A('s_add_u32 s40, s40, s41')
    A('s_mul_i32 s40, s40, 40960')
    A(f's_and_b32 s41, {sW}, 1')
    A('s_lshl_b32 s41, s41, 5')
    A('s_add_u32 s40, s40, s41')
    A(f's_add_u32 s40, s40, {XT[0]}')
    A(f'buffer_store_dwordx4 {vr(vP,4)}, v{vS1}, {SRD_WS}, s40 offen{STSC}')
    A(f'buffer_store_dwordx4 {vr(vP+4,4)}, v{vS1}, {SRD_WS}, s40 offen offset:2048{STSC}')
    A(f'buffer_store_dwordx2 {vr(vP+8,2)}, v{vS2}, {SRD_WS}, s40 offen{STSC}')
    A('s_waitcnt vmcnt(3)')
    A.vm = []
    A('s_barrier')
    A(f's_cmp_ge_u32 {sRB}, 24')
    A('s_cbranch_scc1 L_p0_jobW')
    A(f'v_bfe_u32 v{t0}, v{vL}, 2, 2')
    A(f'v_lshl_add_u32 v{t1}, v{vQ}, 3, v{t0}')
    A(f'v_lshlrev_b32 v{t1}, 7, v{t1}')
    A(f'v_and_b32 v{t2}, 3, v{vL}')
    A(f'v_lshl_add_u32 v{t1}, v{t2}, 3, v{t1}')
    A(f'v_add_u32 v{t1}, s45, v{t1}')
    A(f'v_lshrrev_b32 v{t0}, 1, v{t0}')
    A(f'v_and_b32 v{t2}, 1, v{vQ}')
    A(f'v_lshl_or_b32 v{t0}, v{t2}, 1, v{t0}')
    for j in range(4):
        A(f's_add_u32 s40, {sW}, {j+1}')
        A('s_and_b32 s40, s40, 3')
        A(f'v_xor_b32 v{t2}, s40, v{t0}')
        A(f'v_lshl_add_u32 v{vTR+j}, v{t2}, 5, v{t1}')
    for j in range(4):
        for ks in range(5):
            for hh in range(2):
                A(f'ds_read_b64_tr_b16 {ar((j*5+ks)*4+2*hh,2)}, v{vTR+j} offset:{ks*4096+hh*512}')
    A.wait_all(vm=False)
    A(f's_cmp_lt_u32 {sRB}, 7')
    A('s_cbranch_scc1 L_p0_b_nonext')
    dma_c()
    A.label('L_p0_b_nonext')
    ksplit_core(5, xf, yf, 'L', accf, True, vREDW, vREDR, vRED)
    finish_scale()
    pack_L(lambda t: vRED + 4 * t, vP)
    A(f'v_or_b32 v{t0}, {sCB}, v{vQ}')
    A(f'v_cmp_eq_u32 vcc, 0, v{t0}')
    A(f'v_and_b32 v{t1}, 0xffff, v{vP}')
    A(f'v_cndmask_b32 v{vP}, v{vP}, v{t1}, vcc')
    A(f's_mul_i32 s40, {sRB}, 43')
    A('s_lshr_b32 s40, s40, 7')
    A('s_mul_i32 s41, s40, 3')
    A(f's_sub_u32 s41, {sRB}, s41')
    A(f'v_bfe_u32 v{t0}, v{vN}, 2, 1')
    A(f'v_lshrrev_b32 v{t1}, 3, v{vN}')
    A(f'v_and_b32 v{t2}, 3, v{vN}')
    A(f'v_lshl_add_u32 v{t1}, v{t1}, 2, v{t2}')
    A(f's_and_b32 s42, {sW}, 1')
    A('s_lshl_b32 s42, s42, 3')
    A(f'v_add_u32 v{t1}, s42, v{t1}')
    A(f'v_lshl_add_u32 v{t0}, v{t0}, 6, v{t1}')
    A(f'v_add_u32 v{t1}, 128, v{vN}')
    A('s_cmp_eq_u32 s41, 2')
    A('s_cselect_b64 vcc, -1, 0')
    A(f'v_cndmask_b32 v{t0}, v{t0}, v{t1}, vcc')
    A(f's_lshr_b32 s42, {sW}, 1')
    A('s_lshl_b32 s43, s41, 1')
    A('s_add_u32 s42, s42, s43')
    A('s_cmp_eq_u32 s41, 2')
    A(f's_cselect_b32 s42, {sW}, s42')
    A('s_lshl_b32 s40, s40, 2')
    A('s_add_u32 s40, s40, s42')
    A('s_mul_i32 s40, s40, 61440')
    A(f's_add_u32 s40, s40, {W1F}')
    A(f'v_lshl_add_u32 v{t1}, v{vQ}, 4, v{t0}')
    A(f'v_lshlrev_b32 v{vS1}, 4, v{t1}')
    A(f's_and_b32 s42, {sCB}, 1')
    A('s_lshl_b32 s43, s42, 1')
    A(f'v_lshrrev_b32 v{t1}, 1, v{vQ}')
    A(f'v_add_u32 v{t1}, s43, v{t1}')
    A(f'v_lshl_add_u32 v{t1}, v{t1}, 4, v{t0}')
    A(f'v_lshlrev_b32 v{t1}, 4, v{t1}')
    A(f'v_and_b32 v{t2}, 1, v{vQ}')
    A(f'v_lshl_add_u32 v{vS2}, v{t2}, 3, v{t1}')
    A('s_lshr_b32 s41, s47, 5')
    A('s_mul_i32 s41, s41, 3072')
    A('s_add_u32 s41, s41, s40')
    A('s_lshr_b32 s42, s48, 5')
    A('s_mul_i32 s42, s42, 3072')
    A('s_add_u32 s42, s42, s40')
    A(f'buffer_store_dwordx4 {vr(vP,4)}, v{vS1}, {SRD_WS}, s41 offen{STSC}')
    A(f'buffer_store_dwordx4 {vr(vP+4,4)}, v{vS1}, {SRD_WS}, s41 offen offset:3072{STSC}')
    A(f'buffer_store_dwordx2 {vr(vP+8,2)}, v{vS2}, {SRD_WS}, s42 offen{STSC}')
    A(f's_cmp_lt_u32 {sRB}, 7')
    A('s_cbranch_scc1 L_p0_end')
    A('s_waitcnt vmcnt(3)')
    A.vm = []
    A('s_barrier')
    A('s_branch L_p0_jobc')
    A.label('L_p0_jobW')
    A.pad(8)
    vWB = 56
    A(f'v_and_b32 v{t0}, 3, v0')
    A(f'v_lshrrev_b32 v{t1}, 2, v0')
    A(f'v_mul_u32_u24 v{t2}, 642, v{t0}')
    A(f'v_lshl_add_u32 v{vWB}, v{t1}, 1, v{t2}')
    A(f'v_add_u32 v{vWB+1}, 40960, v{vWB}')
    A(f'v_cmp_gt_u32 vcc, 4, v0')
    A(f'v_add_u32 v{t2}, 640, v{vWB}')
    A(f'v_cndmask_b32 v{vWB+2}, v{vWB}, v{t2}, vcc')
    A(f'v_add_u32 v{vWB+3}, 40960, v{vWB+2}')
    A(f'v_lshlrev_b32 v{t1}, 13, v{t1}')
    A(f'v_lshl_add_u32 v{vS1}, v{t0}, 4, v{t1}')
    A('s_lshr_b32 s40, s52, 4')
    A('s_lshl_b32 s40, s40, 11')
    A('s_and_b32 s41, s52, 15')
    A('s_lshl_b32 s41, s41, 6')
    A('s_add_u32 s40, s40, s41')
    A(f's_add_u32 s40, s40, {WT}')
    for it in range(10):
        part, pb = it // 5, it % 5
        d = 60 + (it % 2) * 12
        for u in range(2):
            for i in range(4):
                b = vWB + (2 if pb == 0 else 0) + (i >> 1)
                A(f'ds_read_u16 v{d+4*u+i}, v{b} offset:{(i&1)*20480+part*6144+u*2568+pb*128}')
        for k in range(4):
            A(f'v_lshl_or_b32 v{d+8+k}, v{d+2*k+1}, 16, v{d+2*k}')
        A(f's_add_u32 s41, s40, {pb*64*8192}')
        A(f'buffer_store_dwordx4 {vr(d+8,4)}, v{vS1}, {SRD_WS}, s41 offen offset:{part*1024}{STSC}')
    A.wait_all(vm=False)
    A('s_barrier')
    dma_c(maybe=False)
    A.wait_all()
    A.label('L_p0_jobc')
    A.pad(8)
    read_row_frags()
    A(f's_lshr_b32 s40, {sCB}, 1')
    A(f's_cmp_lg_u32 s40, {sW}')
    A('s_cbranch_scc1 L_p0_now2g')
    A('s_cmp_eq_u32 s50, 24')
    A('s_cbranch_scc1 L_p0_now2g')
    vG = 96
    A(f'v_bfe_u32 v{t0}, v{vL}, 2, 2')
    A(f'v_and_b32 v{t1}, 1, v{vQ}')
    A(f'v_lshl_add_u32 v{t0}, v{t1}, 3, v{t0}')
    A(f'v_mul_u32_u24 v{t0}, 320, v{t0}')
    A(f'v_add_u32 v{t0}, s45, v{t0}')
    A(f'v_lshlrev_b32 v{t1}, 1, v{t1}')
    A(f'v_and_b32 v{t2}, 3, v{vL}')
    A(f's_and_b32 s42, {sCB}, 1')
    A('s_mul_i32 s43, s42, 192')
    A(f'v_xor_b32 v{t3}, v{t2}, v{t1}')
    A(f'v_lshl_add_u32 v{vS1}, v{t3}, 4, v{t0}')
    A(f'v_add_u32 v{vS1}, s43, v{vS1}')
    A('s_lshl_b32 s43, s42, 1')
    A(f'v_lshrrev_b32 v{t3}, 1, v{t2}')
    A(f'v_add_u32 v{t3}, s43, v{t3}')
    A(f'v_xor_b32 v{t3}, v{t3}, v{t1}')
    A(f'v_lshl_add_u32 v{vS2}, v{t3}, 4, v{t0}')
    A(f'v_and_b32 v{t3}, 1, v{t2}')
    A(f'v_lshl_add_u32 v{vS2}, v{t3}, 3, v{vS2}')
    for K in range(2):
        A(f'v_lshrrev_b32 v{t3}, 1, v{vQ}')
        A(f's_sub_u32 s43, {2*K+3}, {sW}')
        A(f'v_add_u32 v{t3}, s43, v{t3}')
        A(f'v_and_b32 v{t3}, 3, v{t3}')
        A(f'v_mul_u32_u24 v{t3}, 5120, v{t3}')
        A(f'v_add_u32 v{vTR+2*K}, v{t3}, v{vS1}')
        A(f'v_add_u32 v{vTR+2*K+1}, v{t3}, v{vS2}')
    for K in range(2):
        for t in range(5):
            for hh in range(2):
                if t < 4: A(f'ds_read_b64_tr_b16 {vr(vG+(K*5+t)*4+2*hh,2)}, v{vTR+2*K} offset:{hh*1280+(t>>1)*64+(t&1)*8}', maybe=True)
                else: A(f'ds_read_b64_tr_b16 {vr(vG+(K*5+t)*4+2*hh,2)}, v{vTR+2*K+1} offset:{hh*1280+128}', maybe=True)
    A.wait_all(vm=False)
    A(f's_mul_i32 s40, {sCB}, {W2STRIDE}')
    A('s_mul_i32 s41, s50, 10240')
    A('s_add_u32 s40, s40, s41')
    A(f's_add_u32 s40, s40, {W2G}')
    for k in range(10):
        if k in (4, 8): A('s_add_u32 s40, s40, 4096')
        A(f'buffer_store_dwordx4 {vr(vG+4*k,4)}, v{vL16}, {SRD_WS}, s40 offen offset:{(k&3)*1024}{STSC}', maybe=True)
    A.label('L_p0_now2g')
    A.pad(2)
    A.wait_all(vm=False)
    ksplit_core(5, xf, yf, 'R', accf, True, vREDW, vREDR, vRED)
    finish_scale()
    pack_R(lambda t: vRED + 4 * t, vP)
    A(f's_and_b32 s42, {sW}, 1')
    A('s_lshl_b32 s42, s42, 1')
    A(f'v_lshrrev_b32 v{t0}, 1, v{vQ}')
    A(f'v_add_u32 v{t0}, s42, v{t0}')
    A(f'v_lshl_add_u32 v{t0}, v{t0}, 4, v{vN}')
    A(f'v_lshlrev_b32 v{t0}, 4, v{t0}')
    A(f'v_and_b32 v{t1}, 1, v{vQ}')
    A(f'v_lshl_add_u32 v{vS1}, v{t1}, 10, v{t0}')
    A(f'v_lshl_add_u32 v{vS2}, v{t1}, 3, v{t0}')
    A(f's_mul_i32 s40, {sCB}, {W2STRIDE}')
    A('s_lshl_b32 s41, s50, 1')
    A(f's_lshr_b32 s42, {sW}, 1')
    A('s_add_u32 s41, s41, s42')
    A('s_mul_i32 s41, s41, 5120')
    A('s_add_u32 s40, s40, s41')
    A(f's_add_u32 s40, s40, {W2F}')
    A('s_add_u32 s41, s40, 4096')
    A(f'buffer_store_dwordx4 {vr(vP,4)}, v{vS1}, {SRD_WS}, s40 offen{STSC}')
    A(f'buffer_store_dwordx4 {vr(vP+4,4)}, v{vS1}, {SRD_WS}, s40 offen offset:2048{STSC}')
    A(f'buffer_store_dwordx2 {vr(vP+8,2)}, v{vS2}, {SRD_WS}, s41 offen{STSC}')
    A.label('L_p0_end')
    A('s_endpgm')

def desc(name, vg, acc):
    return f""".p2align 6
.amdhsa_kernel {name}
  .amdhsa_next_free_vgpr {vg}
  .amdhsa_next_free_sgpr 96
  .amdhsa_accum_offset {acc}
  .amdhsa_group_segment_fixed_size 0
  .amdhsa_kernarg_size 88
  .amdhsa_user_sgpr_count 2
  .amdhsa_user_sgpr_kernarg_segment_ptr 1
  .amdhsa_system_sgpr_workgroup_id_x 1
.end_amdhsa_kernel
"""

if __name__ == '__main__':
    gen_p0()
    hdr = f'; @launch kernel=p0_kernel grid=(256,1,1) block=(256,1,1) lds={LDS_TOTAL}\n'
    txt = hdr + '.amdgcn_target "amdgcn-amd-amdhsa--gfx950"\n.text\n' + A.text() + '.fill 16384, 4, 0xbf800000\n' + '.section .rodata,"a"\n' + desc('p0_kernel', 512, 256)
    open(sys.argv[1], 'w').write(txt)
    print('nops inserted', A.nops, 'lines', len(A.lines))
```

```python
from gen import *
import gen
A = gen.A

def unpack(dst, src, n):
    out = []
    for k in range(n):
        out.append(lambda k=k: A(f'v_lshlrev_b32 v{dst+2*k}, 16, v{src+k}'))
        out.append(lambda k=k: A(f'v_and_b32 v{dst+2*k+1}, 0xffff0000, v{src+k}'))
    return out
def run(lst):
    for f in lst: f()

def gen_col(NC):
    nwg = 320 // NC
    for lay in range(2):
        kernel_head(f'col{lay}_kernel')
        A.forget()
        A(f's_mov_b32 s44, {XT[2*lay]}')
        A(f's_mov_b32 s45, {XT[2*lay+1]}')
        A(f's_mov_b32 s46, {ST0 if lay == 0 else ST2}')
        if lay == 0: A('s_branch L_col_body')
    A.label('L_col_body')
    A(f's_cmp_ge_u32 s2, {nwg}')
    A('s_cbranch_scc1 L_col_end')
    A('s_load_dwordx2 s[34:35], s[0:1], 80')
    vL, vN, vQ, vL16 = 1, 2, 3, 4
    vXO, vSO, vEW, vER = 5, 6, 7, 8
    t0, t1, t2, t3 = 9, 10, 11, 12
    vFr, vFi, vNFi = 16, 24, 32
    vGre, vGim = 40, 56
    vT1c, vT1s, vT2c, vT2s = 72, 80, 88, 96
    vRS = 104
    vTC, vTS = 112, 120
    base = 128
    per = 64
    class C: pass
    cols = []
    for k in range(NC):
        c = C(); b = base + k * 64
        c.raw = b; c.x = b + 8; c.wraw = b + 24; c.w = b + 32; c.C = b + 48
        cols.append(c)
    for k, c in enumerate(cols):
        c.z = 112 + 8 * k
        c.inb = k * 32
        c.t = c.wraw
    lane_ids(vL, vN, vQ, vL16)
    A(f's_lshl_b32 s40, {sW}, 4')
    A(f'v_add_u32 v{t0}, s40, v{vN}')
    A(f'v_mul_u32_u24 v{vXO}, 40960, v{t0}')
    A(f'v_lshl_add_u32 v{vXO}, v{vQ}, 4, v{vXO}')
    A(f'v_lshlrev_b32 v{vSO}, 7, v{t0}')
    A(f'v_lshl_add_u32 v{vSO}, v{vQ}, 5, v{vSO}')
    A(f's_mul_i32 s47, s2, {128*NC}')
    A('s_add_u32 s44, s44, s47')
    A('s_add_u32 s45, s45, s47')
    A(f's_mul_i32 s48, s2, {8192*NC}')
    A(f's_lshl_b32 s41, {sW}, 11')
    A('s_add_u32 s48, s48, s41')
    A(f's_add_u32 s48, s48, {WT}')
    A('s_add_u32 s49, s48, 8192')
    A.wait_all(vm=False)
    srd(8, P_WS, WS_SIZE)
    A(f'buffer_load_dwordx4 {vr(vRS,4)}, v{vSO}, {SRD_WS}, s46 offen')
    A(f'buffer_load_dwordx4 {vr(vRS+4,4)}, v{vSO}, {SRD_WS}, s46 offen offset:16')
    for k, c in enumerate(cols):
        A(f'buffer_load_dwordx4 {vr(c.raw,4)}, v{vXO}, {SRD_WS}, s44 offen offset:{k*128}')
        A(f'buffer_load_dwordx4 {vr(c.raw+4,4)}, v{vXO}, {SRD_WS}, s44 offen offset:{k*128+64}')
    for k, c in enumerate(cols):
        A(f'buffer_load_dwordx4 {vr(c.wraw,4)}, v{vL16}, {SRD_WS}, s{48+k} offen')
        A(f'buffer_load_dwordx4 {vr(c.wraw+4,4)}, v{vL16}, {SRD_WS}, s{48+k} offen offset:1024')
    vTf, vQf, vPf = 13, 14, 15
    A(f'v_cvt_f32_u32 v{vTf}, v{t0}')
    A(f'v_cvt_f32_u32 v{vQf}, v{vQ}')
    A(f'v_lshrrev_b32 v{t1}, 2, v{vN}')
    A(f'v_and_b32 v{t2}, 3, v{vN}')
    A(f'v_lshl_add_u32 v{t1}, v{t1}, 3, v{t2}')
    A(f'v_cvt_f32_u32 v{vPf}, v{t1}')
    def sincos(n, stepreg, basereg, k0):
        for e in range(n):
            k = k0 + e
            if k == 0: src = basereg
            else:
                A(f'v_fmamk_f32 v{vTS+e}, v{stepreg}, {fhex(float(k))}, v{basereg}'); src = vTS + e
            A(f'v_cos_f32 v{vTC+e}, v{src}')
            A(f'v_sin_f32 v{vTS+e}, v{src}')
    for u in range(2):
        A(f'v_add_f32 v{t1}, {fhex(4.0*u)}, v{vPf}')
        A(f'v_mul_f32 v{t1}, {fhex(1/32)}, v{t1}')
        A(f'v_mul_f32 v{t2}, {fhex(8.0)}, v{vQf}')
        A(f'v_mul_f32 v{t2}, v{t2}, v{t1}')
        sincos(8, t1, t2, 0)
        for k in range(4):
            A(f'v_cvt_pk_bf16_f32 v{vFr+4*u+k}, v{vTC+2*k}, v{vTC+2*k+1}')
            A(f'v_cvt_pk_bf16_f32 v{vNFi+4*u+k}, v{vTS+2*k}, v{vTS+2*k+1}')
            A(f'v_xor_b32 v{vFi+4*u+k}, 0x80008000, v{vNFi+4*u+k}')
    A(f'v_mul_f32 v{t1}, {fhex(1/64)}, v{vTf}')
    A(f'v_mul_f32 v{t2}, 4.0, v{vQf}')
    A(f'v_mul_f32 v{t2}, v{t2}, v{t1}')
    for w2 in range(4):
        sincos(4, t1, t2, 16 * w2)
        for k in range(2):
            A(f'v_cvt_pk_bf16_f32 v{vGre+4*w2+k}, v{vTC+2*k}, v{vTC+2*k+1}')
            A(f'v_cvt_pk_bf16_f32 v{vGre+4*w2+2+k}, v{vTS+2*k}, v{vTS+2*k+1}')
            A(f'v_mov_b32 v{vGim+4*w2+2+k}, v{vGre+4*w2+k}')
            A(f'v_xor_b32 v{vGim+4*w2+k}, 0x80008000, v{vGre+4*w2+2+k}')
    A(f'v_cvt_f32_u32 v{t3}, s40')
    A(f'v_fmac_f32 v{t3}, 4.0, v{vQf}')
    for u in range(2):
        A(f'v_add_f32 v{t1}, {fhex(4.0*u)}, v{vPf}')
        A(f'v_mul_f32 v{t1}, {fhex(1/2048)}, v{t1}')
        A(f'v_mul_f32 v{t2}, v{t3}, v{t1}')
        for i in range(4):
            if i == 0: src = t2
            else:
                A(f'v_fmamk_f32 v{vT1s+4*u+i}, v{t1}, {fhex(float(i))}, v{t2}'); src = vT1s + 4*u + i
            A(f'v_cos_f32 v{vT1c+4*u+i}, v{src}')
            A(f'v_sin_f32 v{vT1s+4*u+i}, v{src}')
    A(f'v_mul_f32 v{t1}, {fhex(1/2048)}, v{vTf}')
    A(f'v_mul_f32 v{t2}, {fhex(8.0)}, v{vQf}')
    A(f'v_mul_f32 v{t2}, v{t2}, v{t1}')
    for e in range(8):
        if e == 0: src = t2
        else:
            A(f'v_fmamk_f32 v{vT2s+e}, v{t1}, {fhex(float(e))}, v{t2}'); src = vT2s + e
        A(f'v_cos_f32 v{vT2c+e}, v{src}')
        A(f'v_sin_f32 v{vT2s+e}, v{src}')
    A(f's_mov_b32 s42, {fhex(1/2048)}')
    for e in range(0, 16, 2):
        A(f'v_pk_mul_f32 {vr(vT2c+e,2)}, {vr(vT2c+e,2)}, s[42:43] op_sel_hi:[1,0]')
    A(f's_lshl_b32 s41, {sW}, 11')
    A(f'v_add_u32 v{vEW}, s41, v{vL16}')
    A(f'v_mov_b32 v{t1}, {fhex(1e-5)}')
    for e in range(8):
        A(f'v_fmamk_f32 v{vRS+e}, v{vRS+e}, {fhex(1/640)}, v{t1}')
    for e in range(8):
        A(f'v_rsq_f32 v{vRS+e}, v{vRS+e}')
    for k, c in enumerate(cols):
        run(unpack(c.x, c.raw, 8))
        for part in range(2):
            for e in range(0, 8, 2):
                A(f'v_pk_mul_f32 {vr(c.C+part*8+e,2)}, {vr(c.x+part*8+e,2)}, {vr(vRS+e,2)}')
        for j in range(8):
            A(f'v_cvt_pk_bf16_f32 v{c.z+j}, v{c.C+2*j}, v{c.C+2*j+1}')
        if k == 0:
            A('s_cmp_lg_u32 s2, 0')
            A('s_cbranch_scc1 L_col_nz1')
            for j in range(4): A(f'v_mov_b32 v{c.z+4+j}, 0')
            A.label('L_col_nz1')
            A.pad(2)
    def s1(c):
        l = []
        for u in range(2):
            l.append(lambda u=u: mfma(c.C+4*u, vr(c.z,4), vr(vFr+4*u,4), '0'))
            l.append(lambda u=u: mfma(c.C+8+4*u, vr(c.z,4), vr(vFi+4*u,4), '0'))
        for u in range(2):
            l.append(lambda u=u: mfma(c.C+4*u, vr(c.z+4,4), vr(vNFi+4*u,4)))
            l.append(lambda u=u: mfma(c.C+8+4*u, vr(c.z+4,4), vr(vFr+4*u,4)))
        return l
    def cmul(c, kind):
        l = []
        if kind == 'tw1': cc, ss = vT1c, vT1s
        elif kind == 'tw2': cc, ss = vT2c, vT2s
        else: cc, ss = c.w, c.w + 8
        R, I = c.C, c.C + 8
        for e in range(0, 8, 2):
            a, b = c.t + (e & 2) * 2, c.t + (e & 2) * 2 + 2
            if kind == 'tw1':
                l.append(lambda e=e, a=a: A(f'v_pk_mul_f32 {vr(a,2)}, {vr(R+e,2)}, {vr(cc+e,2)}'))
                l.append(lambda e=e, b=b: A(f'v_pk_mul_f32 {vr(b,2)}, {vr(I+e,2)}, {vr(cc+e,2)}'))
                l.append(lambda e=e, a=a: A(f'v_pk_fma_f32 {vr(a,2)}, {vr(I+e,2)}, {vr(ss+e,2)}, {vr(a,2)}'))
                l.append(lambda e=e, b=b: A(f'v_pk_fma_f32 {vr(b,2)}, {vr(R+e,2)}, {vr(ss+e,2)}, {vr(b,2)} neg_lo:[1,0,0] neg_hi:[1,0,0]'))
            elif kind == 'tw2':
                l.append(lambda e=e, a=a: A(f'v_pk_mul_f32 {vr(a,2)}, {vr(R+e,2)}, {vr(cc+e,2)}'))
                l.append(lambda e=e, b=b: A(f'v_pk_mul_f32 {vr(b,2)}, {vr(I+e,2)}, {vr(cc+e,2)}'))
                l.append(lambda e=e, a=a: A(f'v_pk_fma_f32 {vr(a,2)}, {vr(I+e,2)}, {vr(ss+e,2)}, {vr(a,2)}'))
                l.append(lambda e=e, b=b: A(f'v_pk_fma_f32 {vr(b,2)}, {vr(R+e,2)}, {vr(ss+e,2)}, {vr(b,2)} neg_lo:[0,0,1] neg_hi:[0,0,1]'))
            else:
                l.append(lambda e=e, a=a: A(f'v_pk_mul_f32 {vr(a,2)}, {vr(R+e,2)}, {vr(cc+e,2)}'))
                l.append(lambda e=e, b=b: A(f'v_pk_mul_f32 {vr(b,2)}, {vr(R+e,2)}, {vr(ss+e,2)}'))
                l.append(lambda e=e, a=a: A(f'v_pk_fma_f32 {vr(a,2)}, {vr(I+e,2)}, {vr(ss+e,2)}, {vr(a,2)} neg_lo:[1,0,0] neg_hi:[1,0,0]'))
                l.append(lambda e=e, b=b: A(f'v_pk_fma_f32 {vr(b,2)}, {vr(I+e,2)}, {vr(cc+e,2)}, {vr(b,2)} neg_lo:[1,0,1] neg_hi:[1,0,1]'))
            u, h = e >> 2, (e >> 1) & 1
            if kind == 'tw2': dr, di = c.z + e // 2, c.z + 4 + e // 2
            else: dr, di = c.z + 4*u + h, c.z + 4*u + 2 + h
            l.append(lambda a=a, dr=dr: A(f'v_cvt_pk_bf16_f32 v{dr}, v{a}, v{a+1}'))
            l.append(lambda b=b, di=di: A(f'v_cvt_pk_bf16_f32 v{di}, v{b}, v{b+1}'))
        return l
    def exw(k, c, ph):
        return [lambda u=u: A(f'ds_write_b128 v{vEW}, {vr(c.z+4*u,4)} offset:{(ph*NC+k)*8192+u*1024}') for u in range(2)]
    def exr(k, c, ph):
        return [lambda u=u, w2=w2: A(f'ds_read_b128 {ar(c.inb+(w2*2+u)*4,4)}, v{vL16} offset:{(ph*NC+k)*8192+w2*2048+u*1024}') for w2 in range(4) for u in range(2)]
    def s23(c, data_is_a):
        l = []
        for w2 in range(4):
            for u in range(2):
                for part, G in ((0, vGre), (1, vGim)):
                    def f(w2=w2, u=u, part=part, G=G):
                        d = ar(c.inb+(w2*2+u)*4, 4); g = vr(G+4*w2, 4)
                        cc = '0' if w2 == 0 else None
                        if data_is_a: mfma(c.C+8*part+4*u, d, g, cc)
                        else: mfma(c.C+8*part+4*u, g, d, cc)
                    l.append(f)
        return l
    def s4(c):
        l = []
        for u in range(2):
            l.append(lambda u=u: mfma(c.x+4*u, vr(vFr+4*u,4), vr(c.z,4)))
            l.append(lambda u=u: mfma(c.x+8+4*u, vr(vNFi+4*u,4), vr(c.z,4)))
        for u in range(2):
            l.append(lambda u=u: mfma(c.x+4*u, vr(vFi+4*u,4), vr(c.z+4,4)))
            l.append(lambda u=u: mfma(c.x+8+4*u, vr(vFr+4*u,4), vr(c.z+4,4)))
        return l
    def pairs(l, per):
        return [lambda g=l[k:k+per]: run(g) for k in range(0, len(l), per)]
    def fin(k, c):
        l = [lambda j=j: A(f'v_cvt_pk_bf16_f32 v{c.C+j}, v{c.x+2*j}, v{c.x+2*j+1}') for j in range(8)]
        def st():
            if k == 0:
                A('s_cmp_lg_u32 s2, 0')
                A('s_cbranch_scc1 L_col_nz2')
                for j in range(4): A(f'v_mov_b32 v{c.C+4+j}, v{c.raw+4+j}')
                A.label('L_col_nz2')
            A(f'buffer_store_dwordx4 {vr(c.C,4)}, v{vXO}, {SRD_WS}, s45 offen offset:{k*128}{STSC}')
            A(f'buffer_store_dwordx4 {vr(c.C+4,4)}, v{vXO}, {SRD_WS}, s45 offen offset:{k*128+64}{STSC}')
        l.append(st)
        return l
    def bar():
        A.wait_all(vm=False); A('s_barrier')
    if NC == 1:
        c = cols[0]
        interleave(s1(c), pairs(unpack(c.w, c.wraw, 8), 2))
        run(cmul(c, 'tw1')); run(exw(0, c, 0)); bar(); run(exr(0, c, 0))
        run(s23(c, False)); run(cmul(c, 'w')); run(exw(0, c, 1)); bar(); run(exr(0, c, 1))
        run(s23(c, True)); run(cmul(c, 'tw2')); run(s4(c)); run(fin(0, c))
    else:
        a, b = cols
        interleave(s1(a), pairs(unpack(a.w, a.wraw, 8), 2))
        interleave(s1(b), pairs(unpack(b.w, b.wraw, 8), 2))
        run(cmul(a, 'tw1')); run(exw(0, a, 0)); run(cmul(b, 'tw1')); run(exw(1, b, 0)); bar()
        run(exr(0, a, 0)); run(exr(1, b, 0))
        run(s23(a, False))
        interleave(s23(b, False), pairs(cmul(a, 'w') + exw(0, a, 1), 2), start=2)
        run(cmul(b, 'w')); run(exw(1, b, 1)); bar()
        run(exr(0, a, 1)); run(exr(1, b, 1))
        run(s23(a, True))
        interleave(s23(b, True), pairs(cmul(a, 'tw2'), 2), start=2)
        interleave(s4(a), pairs(cmul(b, 'tw2'), 3))
        interleave(s4(b), fin(0, a), start=2)
        run(fin(1, b))
    A.label('L_col_end')
    A('s_endpgm')
```

```python
from gen import *
import gen
from gen_col import unpack, run
A = gen.A
LDS_STAT = LDS_X

def spread(main, side, start=0, end=None):
    n = len(main); end = n if end is None else end
    m = end - start
    si = 0
    for i, f in enumerate(main):
        f()
        if start <= i < end:
            tgt = (len(side) * (i - start + 1) + m - 1) // m
            while si < tgt: side[si](); si += 1
    while si < len(side): side[si](); si += 1

def gen_ffn():
    for lay in range(2):
        kernel_head(f'ffn{lay}_kernel')
        A.forget()
        A(f's_mov_b32 {sLAY}, {lay}')
        A(f's_mov_b32 s44, {XT[2*lay+1]}')
        A(f's_mov_b32 s45, {HB[lay]}')
        A(f's_mov_b32 s46, {W2F if lay == 0 else W2G}')
        A(f's_mov_b32 s47, {FLG + lay*32768}')
        if lay == 0: A('s_branch L_ffn_body')
    A.label('L_ffn_body')
    prologue('ffn', 256, 'L_ffn_end')
    vL, vN, vQ, vL16 = 1, 2, 3, 4
    vC = 5
    vREDW, vREDR = [10, 11, 12], 13
    vTB = 14
    t0, t1, t2, t3 = 15, 16, 17, 18
    vS1, vS2 = 19, 20
    vP = 20
    vTA = 32
    vAC = 40
    vBF = 88
    vB1 = 112
    vB1r = 124
    vRS = 192
    vGC = 132
    vSS = 140
    vSX = 144
    vGT = 160
    vH = 176
    vHS = 188
    vDO = 189
    vMK = 190
    lane_ids(vL, vN, vQ, vL16)
    wg_map()
    A(f'v_lshrrev_b32 v{t0}, 5, v{vL}')
    A(f'v_lshlrev_b32 v{t0}, 5, v{t0}')
    A(f'v_xor_b32 v{vDO}, v{t0}, v{vL16}')
    A(f's_mul_i32 s48, {sW}, 10240')
    A(f's_mul_i32 s40, {sRB}, 81920')
    A('s_add_u32 s44, s44, s40')
    A('s_add_u32 s49, s44, s48')
    A(f's_lshl_b32 s40, {sCB}, 2')
    A(f's_add_u32 s40, s40, {sW}')
    A('s_mul_i32 s40, s40, 61440')
    A(f's_add_u32 s40, s40, {W1F}')
    for b in range(4):
        A(f's_add_u32 s41, {sW}, {b}')
        A('s_and_b32 s41, s41, 3')
        A(f's_mul_i32 s{56+b}, s41, 10240')
        A(f's_mul_i32 s41, s41, 15360')
        A(f's_add_u32 s{52+b}, s40, s41')
    A.wait_all(vm=False)
    srd(8, P_WS, WS_SIZE)
    for Tl in range(2):
        for i in range(10):
            if i % 4 == 0:
                A(f's_add_u32 s41, s49, {Tl*40960+i*1024}')
                A(f's_add_u32 m0, s48, {Tl*40960+i*1024}')
            A(f'buffer_load_dwordx4 v{vDO}, {SRD_WS}, s41 offen offset:{(i%4)*1024} lds')
    tok_dma = A.nid
    def loadA(j):
        b, jj = divmod(j, 5)
        A(f's_add_u32 s41, s{52+b}, {jj*3072}')
        for mt in range(3):
            A(f'buffer_load_dwordx4 {ar((j*3+mt)*4,4)}, v{vL16}, {SRD_WS}, s41 offen offset:{mt*1024}')
    srd(12, P_B1, 3072)
    A(f's_mul_i32 s40, {sCB}, 384')
    A(f's_lshl_b32 s41, {sW}, 6')
    A('s_add_u32 s41, s41, s40')
    A(f'v_lshlrev_b32 v{t0}, 4, v{vQ}')
    A(f'buffer_load_dwordx4 {vr(vB1r,4)}, v{t0}, {SRD_A}, s41 offen')
    A(f's_lshl_b32 s41, {sW}, 5')
    A('s_add_u32 s41, s41, s40')
    A(f'v_lshlrev_b32 v{t0}, 3, v{vQ}')
    A(f'buffer_load_dwordx2 {vr(vB1r+4,2)}, v{t0}, {SRD_A}, s41 offen offset:256')
    NPRE = 13
    for j in range(NPRE): loadA(j)
    A(f'v_bfe_u32 v{t0}, v{vL}, 2, 2')
    A(f'v_lshl_add_u32 v{t0}, v{vQ}, 3, v{t0}')
    A(f'v_lshlrev_b32 v{t0}, 6, v{t0}')
    A(f'v_and_b32 v{t1}, 1, v{vQ}')
    A(f'v_lshl_add_u32 v{t0}, v{t1}, 5, v{t0}')
    A(f'v_and_b32 v{t1}, 3, v{vL}')
    A(f'v_lshl_add_u32 v{t0}, v{t1}, 3, v{t0}')
    for b in range(4):
        A(f'v_add_u32 v{vTA+2*b}, s{56+b}, v{t0}')
        A(f'v_xor_b32 v{vTA+2*b+1}, 32, v{vTA+2*b}')
    A(f'v_mov_b32 v{vTB}, v{vTA}')
    cmap_regs(vN, vC, t1, t2)
    A('s_mov_b32 s50, s40')
    A('s_mov_b32 s51, s41')
    red_addrs(vL16, vREDW, vREDR)
    K0 = -2 * 0.7978845608028654 * 1.4426950408889634
    for k in range(2):
        A(f'v_mov_b32 v{vGC+k}, {fhex(K0*0.044715)}')
        A(f'v_mov_b32 v{vGC+2+k}, {fhex(K0)}')
        A(f'v_mov_b32 v{vGC+4+k}, 1.0')
    for k in range(4): A(f'v_mov_b32 v{vSS+k}, 0')
    A(f'v_or_b32 v{t0}, {sW}, v{vQ}')
    A(f'v_cmp_eq_u32 s[60:61], 0, v{t0}')
    A(f'v_mov_b32 v{t1}, 0xffff')
    A(f'v_cndmask_b32 v{vMK}, -1, v{t1}, s[60:61]')
    A(f's_and_b32 s40, {sW}, 1')
    A('s_lshl_b32 s40, s40, 1')
    A(f'v_lshrrev_b32 v{t0}, 1, v{vQ}')
    A(f'v_add_u32 v{t0}, s40, v{t0}')
    A(f'v_lshl_add_u32 v{t0}, v{t0}, 4, v{vN}')
    A(f'v_lshlrev_b32 v{t0}, 4, v{t0}')
    A(f'v_and_b32 v{t1}, 1, v{vQ}')
    A(f'v_mul_u32_u24 v{t1}, 49152, v{t1}')
    A(f'v_add_u32 v{vHS}, v{t0}, v{t1}')
    A(f's_mul_i32 s40, {sRB}, 196608')
    A('s_add_u32 s45, s45, s40')
    A(f's_mul_i32 s40, {sCB}, 6')
    A(f's_add_u32 s41, s40, {sW}')
    A('s_lshl_b32 s41, s41, 10')
    A('s_add_u32 s62, s45, s41')
    A(f's_lshr_b32 s41, {sW}, 1')
    A('s_add_u32 s41, s41, s40')
    A('s_add_u32 s41, s41, 4')
    A('s_lshl_b32 s41, s41, 10')
    A('s_add_u32 s63, s45, s41')
    A(f's_mul_i32 s40, {sCB}, {W2STRIDE}')
    A('s_add_u32 s46, s46, s40')
    A(f's_mul_i32 s40, {sW}, 61440')
    A('s_add_u32 s64, s46, s40')
    run(unpack(vB1, vB1r, 6))

    def trread(dst, Tl, j, u):
        b, jj = divmod(j, 5)
        return [lambda hh=hh: A(f'ds_read_b64_tr_b16 {vr(dst+2*hh,2)}, v{vTA+2*b+u} offset:{Tl*40960+jj*2048+hh*256}') for hh in range(2)]
    def bfr(s, u): return vBF + (s % 3) * 8 + u * 4
    def dots(acc, f, first):
        l = []
        for k in range(4):
            if first and k == 0:
                l.append(lambda: A(f'v_and_b32 v{t3}, v{vMK}, v{f}'))
                l.append(lambda: A(f'v_dot2_f32_bf16 v{acc}, v{t3}, v{t3}, v{acc}'))
            else:
                l.append(lambda k=k: A(f'v_dot2_f32_bf16 v{acc}, v{f+k}, v{f+k}, v{acc}'))
        return l
    def gelu(half):
        l = []
        tiles = [(mt, u) for u in range(2) for mt in range(2)] + [(2, 0), (2, 1)]
        idx = 0
        for (mt, u) in tiles:
            a = vAC + half * 24 + (mt * 2 + u) * 4
            dsth = vH + u * 4 + mt * 2 if mt < 2 else vH + 8 + u * 2
            rs = vRS + (half * 2 + u) * 2
            T = [vGT + (idx % 2) * 8 + 4 * p for p in range(2)]
            idx += 1
            seq = []
            for p in range(2):
                U, X = T[p], T[p] + 2
                seq.append([
                    f'v_pk_fma_f32 {vr(U,2)}, {vr(a+2*p,2)}, {vr(rs,2)}, {vr(vB1+mt*4+2*p,2)}',
                    f'v_pk_mul_f32 {vr(X,2)}, {vr(U,2)}, {vr(U,2)}',
                    f'v_pk_fma_f32 {vr(X,2)}, {vr(X,2)}, {vr(vGC,2)}, {vr(vGC+2,2)}',
                    f'v_pk_mul_f32 {vr(X,2)}, {vr(X,2)}, {vr(U,2)}',
                    f'v_exp_f32 v{X}, v{X}', f'v_exp_f32 v{X+1}, v{X+1}',
                    f'v_pk_add_f32 {vr(X,2)}, {vr(X,2)}, {vr(vGC+4,2)}',
                    f'v_rcp_f32 v{X}, v{X}', f'v_rcp_f32 v{X+1}, v{X+1}',
                    f'v_pk_mul_f32 {vr(X,2)}, {vr(X,2)}, {vr(U,2)}',
                    f'v_cvt_pk_bf16_f32 v{dsth+p}, v{X}, v{X+1}'])
            for k in range(len(seq[0])):
                for p in range(2):
                    l.append(lambda s=seq[p][k]: A(s))
            if mt == 1:
                def st(u=u):
                    A(f's_add_u32 s41, s62, {(half*2+u)*49152}')
                    A(f'buffer_store_dwordx4 {vr(vH+4*u,4)}, v{vL16}, {SRD_WS}, s41 offen sc1')
                l.append(st)
        def st2():
            A(f'v_permlane16_swap_b32 v{vH+8}, v{vH+10}')
            A(f'v_permlane16_swap_b32 v{vH+9}, v{vH+11}')
            A(f's_add_u32 s41, s63, {half*2*49152}')
            A(f'buffer_store_dwordx4 {vr(vH+8,4)}, v{vHS}, {SRD_WS}, s41 offen sc1')
        l.append(st2)
        return l
    def loadW2(k):
        if k % 4 == 0: A(f's_add_u32 s65, s64, {k*1024}')
        A(f'buffer_load_dwordx4 {ar(k*4,4)}, v{vL16}, {SRD_WS}, s65 offen offset:{(k%4)*1024}')
    A.wait_vm(tok_dma)
    steps = [(h, j) for h in range(2) for j in range(20)]
    for s in range(2):
        for u in range(2): run(trread(bfr(s, u), 0, s, u))
    g0 = gelu(0); g0i = 0
    for s, (h, j) in enumerate(steps):
        main = []
        for mt in range(3):
            for u in range(2):
                main.append(lambda mt=mt, u=u: mfma(vAC + h*24 + (mt*2+u)*4, ar((j*3+mt)*4,4), vr(bfr(s,u),4), '0' if j == 0 else None))
        side = []
        if s == 3:
            side.append(lambda: A('s_barrier'))
        if s + 2 < 40:
            h2, j2 = steps[s + 2]
            for u in range(2): side += trread(bfr(s+2, u), h2, j2, u)
        if h == 0:
            if j + NPRE < 20: side.append(lambda: loadA(j + NPRE))
            if j < 5:
                for u in range(2): side += dots(vSS + u, bfr(s, u), j == 0)
            if 4 <= j < 9:
                for u in range(2): side += trread(vSX + ((j-4) & 1) * 8 + u * 4, 1, j - 4, u)
            if 5 <= j < 10:
                for u in range(2): side += dots(vSS + 2 + u, vSX + ((j-5) & 1) * 8 + u * 4, j == 5)
            if j == 10:
                def red():
                    A(f'v_permlane32_swap_b32 v{vSS}, v{vSS+1}')
                    A(f'v_permlane32_swap_b32 v{vSS+2}, v{vSS+3}')
                    A(f'v_add_f32 v{vSS}, v{vSS}, v{vSS+1}')
                    A(f'v_add_f32 v{vSS+2}, v{vSS+2}, v{vSS+3}')
                side.append(red)
            if j == 11:
                def red2():
                    A(f'v_permlane16_swap_b32 v{vSS}, v{vSS+2}')
                    A(f's_lshl_b32 s41, {sW}, 2')
                    A(f's_add_u32 s41, s41, {LDS_STAT}')
                    A(f'v_add_u32 v{t0}, s41, v{vL16}')
                    A(f'v_add_f32 v{vSS}, v{vSS}, v{vSS+2}')
                    gen_ffn.tok = A(f'ds_write_b32 v{t0}, v{vSS}')
                    A(f'v_lshlrev_b32 v{t1}, 4, v{vN}')
                    A(f'v_add_u32 v{t1}, {LDS_STAT}, v{t1}')
                side.append(red2)
            if j == 13:
                def bar():
                    A.wait_lg(gen_ffn.tok); A('s_barrier')
                    for tau in range(4):
                        A(f'ds_read_b128 {vr(vSX+4*tau,4)}, v{t1} offset:{[0,2,1,3][tau]*256}')
                side.append(bar)
            if j == 15:
                for tau in range(4):
                    side.append(lambda tau=tau: A(f'v_pk_add_f32 {vr(vSX+4*tau,2)}, {vr(vSX+4*tau,2)}, {vr(vSX+4*tau+2,2)}'))
                side.append(lambda: A(f'v_mov_b32 v{t2}, {fhex(1e-5)}'))
            if j == 16:
                for tau in range(4):
                    side.append(lambda tau=tau: A(f'v_add_f32 v{vRS+2*tau}, v{vSX+4*tau}, v{vSX+4*tau+1}'))
                for tau in range(4):
                    side.append(lambda tau=tau: A(f'v_fmamk_f32 v{vRS+2*tau}, v{vRS+2*tau}, {fhex(1/640)}, v{t2}'))
            if j == 17:
                for tau in range(4):
                    side.append(lambda tau=tau: A(f'v_rsq_f32 v{vRS+2*tau+1}, v{vRS+2*tau}'))
            if j == 18:
                for tau in range(4):
                    side.append(lambda tau=tau: A(f'v_mov_b32 v{vRS+2*tau}, v{vRS+2*tau+1}'))
        else:
            if j >= 1:
                for mt in range(3): side.append(lambda mt=mt: loadW2((j-1)*3+mt))
                n = (len(g0) * j + 18) // 19
                side += g0[g0i:n]; g0i = n
        spread(main, side)
    for mt in range(3): loadW2(57 + mt)
    run(gelu(1))
    tok_h = A.nid
    vACC, vSL = 32, 112
    slot = lambda j: vSL + (j % 3) * 48
    vRED = 160
    def signal_and_poll(tag):
        A.wait_all(lg=False)
        A('s_barrier')
        A(f's_lshl_b32 s40, {sRB}, 10')
        A('s_add_u32 s47, s47, s40')
        A(f's_cmp_lg_u32 {sW}, 0')
        A(f's_cbranch_scc1 L_ffn_nosig{tag}')
        A(f's_lshl_b32 s40, {sCB}, 7')
        A(f'v_mov_b32 v{t0}, s40')
        A(f'v_mov_b32 v{t1}, 1')
        A('s_mov_b64 exec, 1')
        A(f'buffer_store_dword v{t1}, v{t0}, {SRD_WS}, s47 offen sc1', maybe=True)
        A('s_mov_b64 exec, -1')
        A.label(f'L_ffn_nosig{tag}')
    def poll(tag):
        A(f'v_and_b32 v{t0}, 7, v{vL}')
        A(f'v_lshlrev_b32 v{t0}, 7, v{t0}')
        A('s_mov_b32 s40, 0')
        A('s_mov_b64 exec, 0xff')
        A.label(f'L_ffn_poll{tag}')
        A(f'buffer_load_dword v{t1}, v{t0}, {SRD_WS}, s47 offen sc1')
        A('s_add_u32 s40, s40, 1')
        A.wait_all(lg=False)
        A(f'v_cmp_ne_u32 vcc, 1, v{t1}')
        A('s_cmp_gt_u32 s40, 0x40000')
        A(f's_cbranch_scc1 L_ffn_polled{tag}')
        A(f's_cbranch_vccnz L_ffn_poll{tag}')
        A.label(f'L_ffn_polled{tag}')
        A('s_mov_b64 exec, -1')
    def hbase():
        for j in range(4):
            A(f's_add_u32 s40, {sW}, {j+1}')
            A('s_and_b32 s40, s40, 3')
            A('s_mul_i32 s40, s40, 49152')
            A(f's_mul_i32 s41, {sW}, 12288')
            A('s_add_u32 s40, s40, s41')
            A(f's_add_u32 s{52+j}, s40, s45')
    def loadH(j, ks):
        if ks % 4 == 0: A(f's_add_u32 s66, s{52+j}, {ks*1024}')
        A(f'buffer_load_dwordx4 {vr(slot(j)+ks*4,4)}, v{vL16}, {SRD_WS}, s66 offen offset:{(ks%4)*1024} sc1')
    xf = lambda j, ks: vr(slot(j) + ks * 4, 4)
    yf = lambda ks, t: ar((ks * 5 + t) * 4, 4)
    st = (list(A.vm), list(A.lg), list(A.hist))
    A(f's_cmp_lg_u32 {sLAY}, 0')
    A('s_cbranch_scc1 L_ffn_lay1')
    vBT, vRR, vRX, vSQ, vPK = 72, 80, 92, 24, 100
    A(f'v_lshlrev_b32 v{t0}, 4, v{vN}')
    A(f's_add_u32 s40, s46, {240*1024}')
    A('s_add_u32 s41, s40, 4096')
    for t in range(5):
        A(f'buffer_load_ushort v{vBT+t}, v{t0}, {SRD_WS}, s{40 if t < 4 else 41} offen offset:{(t%4)*1024}')
    signal_and_poll('a')
    hbase()
    A(f's_lshr_b32 s40, {sW}, 1')
    A('s_mul_i32 s40, s40, 40960')
    A(f's_and_b32 s41, {sW}, 1')
    A('s_lshl_b32 s41, s41, 1')
    A(f'v_lshrrev_b32 v{t0}, 1, v{vQ}')
    A(f'v_add_u32 v{t0}, s41, v{t0}')
    A(f'v_and_b32 v{t1}, 1, v{vQ}')
    A(f'v_lshl_add_u32 v{t1}, v{t1}, 3, s40')
    for (c, dst) in ((vC, vS1), (vC + 4, vS2)):
        A(f'v_lshrrev_b32 v{t2}, 2, v{c}')
        A(f'v_and_b32 v{t2}, 2, v{t2}')
        A(f'v_xor_b32 v{t2}, v{t2}, v{t0}')
        A(f'v_lshl_add_u32 v{t2}, v{t2}, 4, v{t1}')
        A(f'v_lshl_add_u32 v{dst}, v{c}, 6, v{t2}')
    for t in range(5):
        if t < 4: A(f'ds_read_b64 {vr(vRR+2*t,2)}, v{vS1} offset:{(t&1)*256+(t>>1)*2048}')
        else: A(f'ds_read_b64 {vr(vRR+2*t,2)}, v{vS2}')
    for t in range(5): A(f'v_lshlrev_b32 v{vBT+t}, 16, v{vBT+t}')
    A(f'v_and_b32 v{t0}, 1, v{vQ}')
    A(f'v_lshl_add_u32 v{t0}, v{t0}, 2, v{vC}')
    A(f'v_lshrrev_b32 v{t1}, 1, v{vQ}')
    A(f'v_lshlrev_b32 v{t1}, 4, v{t1}')
    A(f'v_lshl_add_u32 v{vS1}, v{t0}, 6, v{t1}')
    A(f'v_lshlrev_b32 v{t1}, 3, v{vQ}')
    A(f'v_lshl_add_u32 v{vS2}, v{vC+4}, 6, v{t1}')
    poll('a')
    for j in range(3):
        for ks in range(12): loadH(j, ks)
    pres = []
    for t in range(5):
        pres += unpack(vRX, vRR + 2 * t, 2)
        for p in range(2):
            pres.append(lambda t=t, p=p: A(f'v_pk_add_f32 {vr(vRED+4*t+2*p,2)}, {vr(vRED+4*t+2*p,2)}, {vr(vRX+2*p,2)}'))
        for i in range(4):
            pres.append(lambda t=t, i=i: A(f'v_add_f32 v{vRED+4*t+i}, v{vRED+4*t+i}, v{vBT+t}'))
    acc0 = lambda j, t: vACC + (j & 1) * 20 + t * 4
    ksplit_core(12, xf, yf, 'R', acc0, True, vREDW, vREDR, vRED, presum=pres,
                side={1: [lambda ks=ks: loadH(3, ks) for ks in range(12)]})
    for k in range(0, 20, 2):
        A(f'v_pk_add_f32 {vr(vRED+k,2)}, {vr(vRED+k,2)}, {vr(vACC+20+k,2)}')
    pack_R(lambda t: vRED + 4 * t, vPK)
    A(f's_lshr_b32 s40, {sW}, 1')
    A(f's_lshl_b32 s41, {sRB}, 1')
    A('s_add_u32 s40, s40, s41')
    A('s_mul_i32 s40, s40, 40960')
    A(f's_and_b32 s41, {sW}, 1')
    A('s_lshl_b32 s41, s41, 5')
    A('s_add_u32 s40, s40, s41')
    A(f's_add_u32 s40, s40, {XT[2]}')
    A(f'buffer_store_dwordx4 {vr(vPK,4)}, v{vS1}, {SRD_WS}, s40 offen{STSC}')
    A(f'buffer_store_dwordx4 {vr(vPK+4,4)}, v{vS1}, {SRD_WS}, s40 offen offset:2048{STSC}')
    A(f'buffer_store_dwordx2 {vr(vPK+8,2)}, v{vS2}, {SRD_WS}, s40 offen{STSC}')
    A(f'v_cmp_ne_u32 vcc, 1, v{vC}')
    for p in range(2):
        A(f'v_pk_mul_f32 {vr(vSQ+2*p,2)}, {vr(vRED+2*p,2)}, {vr(vRED+2*p,2)}')
    for i in range(4):
        A(f'v_cndmask_b32 v{vSQ+i}, 0, v{vSQ+i}, vcc')
    for t in range(1, 5):
        for p in range(2):
            A(f'v_pk_fma_f32 {vr(vSQ+2*p,2)}, {vr(vRED+4*t+2*p,2)}, {vr(vRED+4*t+2*p,2)}, {vr(vSQ+2*p,2)}')
    for sh in (8, 4, 2, 1):
        for i in range(4):
            A(f'v_add_f32_dpp v{vSQ+i}, v{vSQ+i}, v{vSQ+i} row_ror:{sh} row_mask:0xf bank_mask:0xf')
    for i in range(1, 4):
        A(f'v_cmp_eq_u32 vcc, {i}, v{vN}')
        A(f'v_cndmask_b32 v{vSQ}, v{vSQ}, v{vSQ+i}, vcc')
    A(f'v_lshl_add_u32 v{t0}, v{vQ}, 2, v{vN}')
    A(f'v_lshlrev_b32 v{t0}, 2, v{t0}')
    A(f's_lshl_b32 s40, {sRB}, 8')
    A(f's_lshl_b32 s41, {sW}, 6')
    A('s_add_u32 s40, s40, s41')
    A(f's_add_u32 s40, s40, {ST2}')
    A('s_mov_b32 exec_lo, 0x000f000f')
    A('s_mov_b32 exec_hi, 0x000f000f')
    A(f'buffer_atomic_add_f32 v{vSQ}, v{t0}, {SRD_WS}, s40 offen')
    A('s_endpgm')
    A.label('L_ffn_lay1')
    A.vm, A.lg, A.hist = st
    vB2r = 20
    vO1, vO2 = 30, 31
    srd(12, P_B2, 1280)
    A(f'v_lshlrev_b32 v{t0}, 4, v{vQ}')
    A('s_lshl_b32 s40, s50, 1')
    A(f'buffer_load_dwordx4 {vr(vB2r,4)}, v{t0}, {SRD_A}, s40 offen')
    A(f'buffer_load_dwordx4 {vr(vB2r+4,4)}, v{t0}, {SRD_A}, s40 offen offset:64')
    A(f'v_lshlrev_b32 v{t0}, 3, v{vQ}')
    A('s_lshl_b32 s40, s51, 1')
    A(f'buffer_load_dwordx2 {vr(vB2r+8,2)}, v{t0}, {SRD_A}, s40 offen')
    vXF, vQA, vST, vQFr, vROT = 112, 192, 196, 204, 212
    for j in range(4):
        A(f's_add_u32 s40, {sW}, {j+1}')
        A('s_and_b32 s41, s40, 1')
        A('s_lshl_b32 s41, s41, 5')
        A('s_bfe_u32 s40, s40, 0x10001')
        A('s_mul_i32 s40, s40, 40960')
        A(f'v_xor_b32 v{vQA+j}, s41, v{vTB}')
        A(f'v_add_u32 v{vQA+j}, s40, v{vQA+j}')
    for jj in range(5):
        for j in range(4):
            for hh in range(2):
                A(f'ds_read_b64_tr_b16 {vr(vXF+(jj*4+j)*4+2*hh,2)}, v{vQA+j} offset:{jj*2048+hh*256}')
    signal_and_poll('b')
    hbase()
    vP0, vDf, vSTP, vBS = 214, 215, 216, 217
    A(f's_mul_i32 s40, {sW}, 80')
    A(f'v_lshl_add_u32 v{t0}, v{vQ}, 2, s40')
    A(f'v_cvt_f32_u32 v{vP0}, v{t0}')
    acc1 = lambda j, t: vACC + j * 20 + t * 4
    for t in range(5):
        A(f'v_cvt_f32_u32 v{vDf}, v{vC+t}')
        A(f'v_mul_f32 v{t0}, v{vDf}, v{vP0}')
        A(f'v_mul_f32 v{t1}, {fhex(1/640)}, v{t0}')
        A(f'v_floor_f32 v{t1}, v{t1}')
        A(f'v_fmamk_f32 v{t0}, v{t1}, {fhex(-640.0)}, v{t0}')
        A(f'v_mul_f32 v{vBS}, {fhex(1/640)}, v{t0}')
        A(f'v_mul_f32 v{vSTP}, {fhex(1/640)}, v{vDf}')
        A(f'v_mul_f32 v{t0}, {fhex(16.0)}, v{vSTP}')
        A(f'v_cos_f32 v{vROT}, v{t0}')
        A(f'v_sin_f32 v{vROT+1}, v{t0}')
        for k in range(4):
            if k == 0: src = vBS
            else:
                A(f'v_fmamk_f32 v{vST+2*k+1}, v{vSTP}, {fhex(float(k))}, v{vBS}'); src = vST + 2*k + 1
            A(f'v_cos_f32 v{vST+2*k}, v{src}')
            A(f'v_sin_f32 v{vST+2*k+1}, -v{src}')
        A(f'v_and_b32 v{t2}, 1, v{vC+t}')
        A(f'v_lshlrev_b32 v{t2}, 15, v{t2}')
        A(f'v_xor_b32 v{t2}, 0x3f353f35, v{t2}')
        for jj in range(5):
            f = vQFr + ((t * 5 + jj) & 1) * 4
            for k in range(4):
                A(f'v_cvt_pk_bf16_f32 v{f+k}, v{vST+2*k}, v{vST+2*k+1}')
            if jj == 0: A(f'v_cndmask_b32 v{f}, v{f}, v{t2}, s[60:61]')
            main = [lambda j=j: mfma(acc1(j, t), vr(f,4), vr(vXF+(jj*4+j)*4,4), '0' if jj == 0 else None) for j in range(4)]
            side = []
            if jj < 4:
                for k in range(4):
                    def rot(k=k):
                        A(f'v_pk_mul_f32 {vr(t1,2)}, {vr(vST+2*k,2)}, {vr(vROT,2)} op_sel_hi:[1,0]')
                        A(f'v_pk_fma_f32 {vr(vST+2*k,2)}, {vr(vST+2*k,2)}, {vr(vROT,2)}, {vr(t1,2)} op_sel:[1,1,0] op_sel_hi:[0,1,1] neg_hi:[0,1,0]')
                    side.append(rot)
            interleave(main, side)
    A(f's_and_b32 s40, {sW}, 1')
    A('s_lshl_b32 s40, s40, 4')
    A(f'v_add_u32 v{t0}, s40, v{vN}')
    A(f'v_mul_u32_u24 v{t0}, 81920, v{t0}')
    A(f'v_lshl_add_u32 v{vO1}, v{vQ}, 4, v{t0}')
    A(f'v_lshl_add_u32 v{vO2}, v{vQ}, 3, v{t0}')
    A(f's_mov_b32 s42, {fhex(ALPHA)}')
    poll('b')
    for j in range(3):
        for ks in range(12): loadH(j, ks)
    for k in range(0, 80, 2):
        A(f'v_pk_mul_f32 {vr(vACC+k,2)}, {vr(vACC+k,2)}, s[42:43] op_sel_hi:[1,0]')
    vRX = 220
    pres = []
    for t in range(5):
        pres += unpack(vRX, vB2r + 2 * t, 2)
        for p in range(2):
            pres.append(lambda t=t, p=p: A(f'v_pk_add_f32 {vr(vRED+4*t+2*p,2)}, {vr(vRED+4*t+2*p,2)}, {vr(vRX+2*p,2)}'))
    ksplit_core(12, xf, yf, 'L', acc1, False, vREDW, vREDR, vRED, presum=pres,
                side={1: [lambda ks=ks: loadH(3, ks) for ks in range(12)]})
    for k in range(0, 20, 2):
        A(f'v_pk_add_f32 {vr(vRED+k,2)}, {vr(vRED+k,2)}, {vr(vACC+60+k,2)}')
    vPK = 224
    pack_L(lambda t: vRED + 4 * t, vPK)
    srd(12, P_OUT, 2621440)
    A(f's_lshr_b32 s40, {sW}, 1')
    A(f's_lshl_b32 s41, {sRB}, 1')
    A('s_add_u32 s40, s40, s41')
    A('s_mul_i32 s40, s40, 1280')
    A('s_lshl_b32 s41, s50, 1')
    A('s_add_u32 s41, s41, s40')
    A('s_lshl_b32 s43, s51, 1')
    A('s_add_u32 s43, s43, s40')
    A(f'buffer_store_dwordx4 {vr(vPK,4)}, v{vO1}, {SRD_A}, s41 offen')
    A(f'buffer_store_dwordx4 {vr(vPK+4,4)}, v{vO1}, {SRD_A}, s41 offen offset:64')
    A(f'buffer_store_dwordx2 {vr(vPK+8,2)}, v{vO2}, {SRD_A}, s43 offen')
    A.label('L_ffn_end')
    A('s_endpgm')
```

```python
import sys
import gen
from gen import *
from gen_col import gen_col
NC = 1
upto = int(sys.argv[2]) if len(sys.argv) > 2 else 5
gen_p0()
gen_col(NC)
launches = [('p0_kernel', 256, LDS_TOTAL), ('col0_kernel', 320//NC, 16384*NC)]
descs = desc('p0_kernel', 512, 256) + desc('col0_kernel', 128+64*NC+32*NC, 128+64*NC) + desc('col1_kernel', 128+64*NC+32*NC, 128+64*NC)
try:
    from gen_ffn import gen_ffn
    gen_ffn()
    launches += [('ffn0_kernel', 256, LDS_TOTAL), ('col1_kernel', 320//NC, 16384*NC), ('ffn1_kernel', 256, LDS_TOTAL)]
    descs += desc('ffn0_kernel', 512, 256) + desc('ffn1_kernel', 512, 256)
except ImportError:
    pass
hdr = ''.join(f'; @launch kernel={k} grid=({g},1,1) block=(256,1,1) lds={l}\n' for k, g, l in launches[:upto])
txt = hdr + '.amdgcn_target "amdgcn-amd-amdhsa--gfx950"\n.text\n' + gen.A.text() + '.fill 16384, 4, 0xbf800000\n' + '.section .rodata,"a"\n' + descs
open(sys.argv[1], 'w').write(txt)
print('nops inserted', gen.A.nops, 'lines', len(gen.A.lines))
```
